```python
import torch

def _softmax(x, axis=-1):
    return torch.softmax(x, dim=axis)
def _gelu(x):
    return torch.nn.functional.gelu(x, approximate="tanh")
def _silu(x):
    return torch.nn.functional.silu(x)
def _sigmoid(x):
    return torch.sigmoid(x)
def _layernorm(x, axis=-1, eps=1e-5):
    m = x.mean(dim=axis, keepdim=True)
    v = x.var(dim=axis, keepdim=True, unbiased=False)
    return (x - m) / torch.sqrt(v + eps)
def _scatter_add(tgt, idx, src, axis=0):
    return tgt.clone().index_add_(axis, idx, src)
def _segment_sum(src, seg, n):
    out = torch.zeros((n,) + src.shape[1:], dtype=src.dtype)
    return out.index_add_(0, seg, src)
def _pad(x, pw):
    flat = tuple(v for pair in reversed(pw) for v in pair)
    return torch.nn.functional.pad(x, flat)

kernel_name = 'recurrent_scan__mha_block__moe_arch_mod__prompt'

def setup_inputs():

    _w = (lambda a: (lambda t: t.to(torch.bfloat16) if t.is_floating_point() else t)(torch.as_tensor(a)))
    def _A_setup():
        B, S, D, H = 1, 2048, 448, 16
        return {
            "x": _w((lambda *s: torch.randn(*s, dtype=torch.bfloat16) * 0.05)(B, S, D)),
            "wqkv": _w((lambda *s: torch.randn(*s, dtype=torch.bfloat16) * 0.05)(D, 3 * D)),
            "wo": _w((lambda *s: torch.randn(*s, dtype=torch.bfloat16) * 0.05)(D, D)),
        }
    _A_in = _A_setup()

    def _B_setup():
        B, S, D, F, C = 1, 2048, 448, 1792, 2
        return {
            "x": _w((lambda *s: torch.randn(*s, dtype=torch.bfloat16) * 0.05)(B, S, D)),
            "w_r": _w((lambda *s: torch.randn(*s, dtype=torch.bfloat16) * 0.05)(D)),
            "w_gate": _w((lambda *s: torch.randn(*s, dtype=torch.bfloat16) * 0.05)(D, F)),
            "w_up": _w((lambda *s: torch.randn(*s, dtype=torch.bfloat16) * 0.05)(D, F)),
            "w_down": _w((lambda *s: torch.randn(*s, dtype=torch.bfloat16) * 0.05)(F, D)),
        }
    _B_in = _B_setup()

    return {
        "A_x": _A_in["x"],
        "A_wqkv": _A_in["wqkv"],
        "A_wo": _A_in["wo"],
        "B_x": _B_in["x"],
        "B_w_r": _B_in["w_r"],
        "B_w_gate": _B_in["w_gate"],
        "B_w_up": _B_in["w_up"],
        "B_w_down": _B_in["w_down"],
    }

def reference(A_x, A_wqkv, A_wo, B_x, B_w_r, B_w_gate, B_w_up, B_w_down):
    def _A_ref(x, wqkv, wo):
        B, S, D = x.shape
        H = 16
        Dh = D // H
        qkv = (lambda x, *d: x.permute(*d))((x @ wqkv).reshape(B, S, 3, H, Dh), 2, 0, 3, 1, 4)
        q, k, v = qkv[0], qkv[1], qkv[2]
        scores = torch.einsum("bhqd,bhkd->bhqk", q, k) * (Dh ** -0.5)
        p = _softmax(scores, axis=-1)
        o = torch.einsum("bhqk,bhkd->bhqd", p, v)
        return (lambda x, *d: x.permute(*d))(o, 0, 2, 1, 3).reshape(B, S, D) @ wo

    def _B_ref(x, w_r, w_gate, w_up, w_down):
        B, S, D = x.shape
        C = 2
        r = x @ w_r
        idx = torch.argsort(-r, axis=-1)[:, :C]
        idx_e = (lambda x, n, axis: torch.repeat_interleave(x, n, dim=axis))(idx.reshape(B, C, 1), D, axis=2)
        x_sel = (lambda x, i, axis: torch.take_along_dim(x, i, dim=axis))(x, idx_e, axis=1)
        g = _silu(x_sel @ w_gate)
        u = x_sel @ w_up
        y = (g * u) @ w_down
        r_sel = _sigmoid((lambda x, i, axis: torch.take_along_dim(x, i, dim=axis))(r, idx, axis=1))
        y = y * r_sel.reshape(B, C, 1)
        b_off = (torch.arange(B) * S).reshape(B, 1)
        flat_idx = (idx + b_off).reshape(B * C)
        zero = (x * 0.0).reshape(B * S, D)
        upd = _scatter_add(zero, flat_idx, y.reshape(B * C, D), axis=0)
        return x + upd.reshape(B, S, D)

    x = A_x
    xn = _layernorm(x, axis=-1)
    s = _A_ref(xn, A_wqkv, A_wo)
    g = _silu(_B_ref(xn, B_w_r, B_w_gate, B_w_up, B_w_down))
    return x + s * g
```

```python
class Asm:
    def __init__(self):
        self.lines = []
    def __call__(self, s="", *more):
        for x in (s,)+more:
            for l in x.split("\n"):
                l = l.rstrip()
                if l.strip()=="" : continue
                if l.strip().endswith(":") or l.lstrip().startswith("."):
                    self.lines.append(l.strip())
                else:
                    self.lines.append("    " + l.strip())
    def text(self):
        return "\n".join(self.lines) + "\n"
def vr(a, n=1):
    return f"v{a}" if n==1 else f"v[{a}:{a+n-1}]"
def sr(a, n=1):
    return f"s{a}" if n==1 else f"s[{a}:{a+n-1}]"
def ar(a, n=1):
    return f"a{a}" if n==1 else f"a[{a}:{a+n-1}]"
```

```python
import re
REG = re.compile(r'^(-|abs\()?\|?([vsa])(?:(\d+)|\[(\d+):(\d+)\])\)?\|?$')
def regs(op):
    op = op.strip()
    if op in ("vcc",): return {("s",106),("s",107)}
    if op == "vcc_lo": return {("s",106)}
    if op == "vcc_hi": return {("s",107)}
    if op == "exec": return {("s",126),("s",127)}
    if op == "exec_lo": return {("s",126)}
    if op == "exec_hi": return {("s",127)}
    if op == "m0": return {("s",124)}
    m = REG.match(op)
    if not m: return set()
    k = m.group(2)
    if m.group(3) is not None: return {(k,int(m.group(3)))}
    return {(k,i) for i in range(int(m.group(4)), int(m.group(5))+1)}
TRANS = ("v_exp_","v_log_","v_rcp_","v_rsq_","v_sqrt_","v_sin_","v_cos_")
class I:
    def __init__(s, text):
        s.text = text
        t = text.split(";")[0].strip()
        p = t.split(None,1)
        s.op = p[0]; rest = p[1] if len(p)>1 else ""
        ops = [o.strip() for o in rest.split(",")] if rest else []
        s.mods = ""
        if ops:
            q = ops[-1].split(None,1)
            ops[-1] = q[0]
            if len(q)>1: s.mods = q[1]
        s.ops = ops
        op = s.op
        s.mfma = op.startswith("v_mfma") or op.startswith("v_smfmac")
        s.valu = op.startswith("v_") and not s.mfma
        s.trans = op.startswith(TRANS)
        s.salu = op.startswith("s_")
        s.vmem = op.startswith(("buffer_","global_","flat_"))
        s.ds = op.startswith("ds_")
        s.dpp = ("row_" in s.mods or "quad_perm" in s.mods or "wave_" in s.mods or op.endswith("_dpp"))
        s.dot = op.startswith("v_dot")
        s.lds_dma = s.vmem and (re.search(r'\blds\b', s.mods) is not None or "load_lds" in op)
        R = [regs(o) for o in ops]
        s.defs=set(); s.uses=set(); s.srcC=set(); s.store_data=set(); s.passes=0
        U = lambda l: set().union(*l) if l else set()
        if s.mfma:
            s.defs = R[0]; s.ab = R[1]|R[2]
            if op.startswith("v_smfmac"): s.srcC = R[0]; s.ab |= R[3]
            else: s.srcC = R[3]
            s.uses = s.ab | s.srcC
            s.passes = 8 if "32x32" in op else 4
        elif s.vmem:
            if "store" in op or ("atomic" in op):
                s.uses = U(R)
                if op.startswith("buffer_"): s.store_data = R[0]
                else: s.store_data = R[1]
                if not ("x3" in op or "x4" in op): s.store_data=set()
            elif s.lds_dma: s.uses = U(R) | {("s",124)}
            elif op in ("buffer_inv","buffer_wbl2"): pass
            else: s.defs = R[0]; s.uses = U(R[1:])
        elif s.ds:
            if op.startswith(("ds_write","ds_add_u32","ds_or_b32","ds_max_")) and "rtn" not in op: s.uses = U(R)
            else: s.defs = R[0]; s.uses = U(R[1:])
        elif s.valu:
            if op.startswith("v_nop"): pass
            elif op.startswith("v_cmpx"): s.defs = R[0]|{("s",126),("s",127)}; s.uses=U(R[1:])
            elif op.startswith("v_permlane") and "swap" in op: s.defs=R[0]|R[1]; s.uses=R[0]|R[1]
            elif op.startswith(("v_add_co","v_sub_co","v_addc_co","v_subb_co","v_div_scale")): s.defs=R[0]|R[1]; s.uses=U(R[2:])
            else:
                s.defs = R[0]; s.uses = U(R[1:])
                if op.startswith(("v_fmac","v_dot2c","v_writelane","v_pk_fmac")) or s.dpp or "UNUSED_PRESERVE" in s.mods: s.uses |= R[0]
        elif s.salu:
            if op.startswith(("s_cmp","s_cbranch","s_branch","s_waitcnt","s_nop","s_barrier","s_setprio","s_sleep","s_endpgm","s_bitcmp","s_setpc")): s.uses=U(R)
            else:
                s.defs = R[0] if R else set(); s.uses=U(R[1:])
                if "saveexec" in op: s.defs |= {("s",126),("s",127)}
        s.ws = 1
        if op=="s_nop": s.ws = int(ops[0],0)+1
    def v(s, x): return {r for r in x if r[0] in "va"}
    def sg(s, x): return {r for r in x if r[0]=="s"}
EXEC={("s",126),("s",127)}
def need(p, c):
    n = 0
    pv = p.v(p.defs); ps = p.sg(p.defs)
    if p.valu:
        if c.mfma and (pv & c.uses): n=max(n,2)
        if c.mfma and (ps & EXEC): n=max(n,4)
        if c.valu and c.dpp and (pv & c.uses): n=max(n,2)
        if c.valu and c.dpp and (ps & EXEC): n=max(n,5)
        if c.op.startswith("v_permlane") and (pv & c.uses): n=max(n,2)
        if c.op.startswith(("v_readlane","v_readfirstlane")) and (pv & c.uses): n=max(n,1)
        if c.op.startswith(("v_readlane","v_writelane")) and (ps & c.uses): n=max(n,4)
        if c.op.startswith(("v_readlane","v_readfirstlane","v_writelane","v_permlane")) and (ps & EXEC): n=max(n,4)
        if c.valu and (ps & c.uses): n=max(n,2)
        if c.vmem and (ps & c.uses): n=max(n,5)
        if p.trans and c.valu and (pv & c.uses): n=max(n,1)
        if ("dst_sel" in p.mods or "op_sel" in p.mods) and not p.op.startswith("v_pk_") and c.valu and (pv & (c.uses|c.defs)): n=max(n,1)
        if p.dot and (c.valu or c.mfma) and (pv & (c.uses|c.defs)):
            n=max(n,3)
        if c.op.startswith("v_div_fmas") and (ps & {("s",106),("s",107)}): n=max(n,4)
        if c.salu and (ps & c.uses): n=max(n,1)
    if p.mfma:
        P=p.passes; big={4:8,8:12}[P]
        if c.mfma:
            if pv & c.ab: n=max(n,big)
            if pv & c.srcC:
                if not (c.srcC==pv and c.passes==P): n=max(n,{4:6,8:10}[P])
            elif pv & c.defs and c.defs!=pv: n=max(n,{4:6,8:10}[P])
        elif c.valu or c.vmem or c.ds:
            if pv & (c.uses|c.defs): n=max(n,big)
        if c.valu and (p.srcC & c.defs): n=max(n,{4:3,8:7}[P])
    if p.store_data and (p.store_data & c.defs): n=max(n,2 if c.valu else 1)
    if p.salu and (("s",124) in p.defs) and (c.lds_dma or "addtid" in c.op): n=max(n,1)
    return n
def fix(text, verbose=False):
    lines = text.split("\n")
    items=[]; intext=True
    for li,l in enumerate(lines):
        t=l.split(";")[0].strip()
        if not t: continue
        if t.startswith(".section") or t.startswith(".amdhsa") or t.startswith(".end_amdhsa"): intext=False; continue
        if t==".text": intext=True; continue
        if not intext: continue
        if t.endswith(":"): items.append(("L",t[:-1],li))
        elif t.startswith("."): continue
        else: items.append(("I",I(l),li))
    lab={o:i for i,(k,o,_) in enumerate(items) if k=="L"}
    preds={i:[] for i in range(len(items))}
    for i,(k,o,_) in enumerate(items):
        fall=True
        if k=="I":
            if o.op=="s_branch" or o.op=="s_endpgm" or o.op.startswith("s_setpc"): fall=False
            if o.op=="s_branch" or o.op.startswith("s_cbranch"): preds[lab[o.ops[0]]].append(i)
        if fall and i+1<len(items): preds[i+1].append(i)
    pad=[0]*len(items); why={}
    changed=True
    while changed:
        changed=False
        for i,(k,c,li) in enumerate(items):
            if k!="I": continue
            worst=0; w=None
            stack=[(p,pad[i]) for p in preds[i]]; seen={}
            while stack:
                j,d=stack.pop()
                if d>=12: continue
                if j in seen and seen[j]<=d: continue
                seen[j]=d
                kk,p,_=items[j]
                if kk=="I":
                    n=need(p,c)
                    if n-d>worst: worst=n-d; w=p
                    d2=d+p.ws+pad[j]
                else: d2=d
                for q in preds[j]: stack.append((q,d2))
            if worst>0:
                pad[i]+=worst; why[i]=w.text.strip(); changed=True
    out=list(lines); total=0
    for i in range(len(items)-1,-1,-1):
        if pad[i]:
            out.insert(items[i][2], f"    s_nop {pad[i]-1}")
            total+=1
            if verbose: print(f"hazard pad {pad[i]}: [{why[i]}] -> [{items[i][1].text.strip()}]")
    return "\n".join(out), total
```

```python
import sys
from asmlib import Asm, vr, sr
import hazard

NAME = "recurrent_scan__mha_block__moe_arch_mod__prompt"

WS_EPOCH = 0x0
WS_SELH = 0x100
WS_XS = 0x1000
WS_ST = 0x8000
WS_KF = 0x10000
WS_OF = 0x50000
WS_PRE = 0x90000
WS_YP = 0xB0000
WS_STAMP = 0xD0000
WS_KV = 0x100000
WS_OB = 0x500000
WS_SIZE = 0x800000

L_W = 0
L_Y = 57344
L_X = 98304
L_WQ = 114688
L_QL = 143360
L_MISC = 155648
L_CS = L_MISC
L_CSQ = L_MISC + 512
L_RS = L_MISC + 1024
L_TAG = L_MISC + 2048
L_RFLAG = L_MISC + 2112
L_SEL = L_MISC + 2304
L_BNC = L_MISC + 2560
L_UPD = L_MISC + 4608
L_WO = 0
L_RING = 100352
L_LX = L_RING + 32768
L_F1 = 135168
L_F2 = 149504
LDS_SIZE = 163840

S_X, S_W, S_WS, S_WO, S_OUT, S_F1, S_DN, S_WR = 4, 8, 12, 16, 20, 24, 28, 32
S_TAG, S_WV, S_MB, S_J, S_H = 36, 37, 38, 39, 40
S_T0, S_T1, S_T2, S_T3, S_T4, S_T5 = 41, 42, 43, 44, 45, 46
S_TILE = 47
S_C = 48
S_WB, S_XB, S_LB = 49, 50, 51
S_M28, S_MLO, S_P = 52, 54, 56
S_SPIN = 58
S_KVB = 59
S_P2 = 60
S_JOB = 62
S_QB = 63
S_STA = 71
S_RQ = 79
S_RX, S_RW = 64, 72
S_ST = 80

SPIN_MAX = 200000


class VM:
    def __init__(self, ops=()):
        self.q = list(ops)
    def add(self, name):
        self.q.append(name)
    def wait(self, name):
        idx = max(i for i, n in enumerate(self.q) if n == name)
        n = len(self.q) - 1 - idx
        assert n <= 63
        return f"s_waitcnt vmcnt({n})"
    def copy(self):
        return VM(self.q)


def srd(a, s, size):
    a(f"s_mov_b32 s{s+2}, {size:#x}", f"s_mov_b32 s{s+3}, 0x20000")


class Gen:
    def __init__(self, cfg):
        self.cfg = dict(amb=4, rot=(2, 1, 0), stamps=False, win=6, prio={0: 3, 18: 2, 26: 1, 30: 0},
                        force_fb=False, sel_id=255)
        self.cfg.update(cfg)
        self.a = Asm()
        self.nlab = 0
        self.nstamp = 0

    def lab(self, p="L"):
        self.nlab += 1
        return f"{p}_{self.nlab}"

    def stamp(self, i):
        if self.cfg["stamps"]:
            self.a(f"s_memrealtime s[{S_ST+2*i}:{S_ST+2*i+1}]", "s_waitcnt lgkmcnt(0)")

    def poll(self, body, sleep=0):
        a = self.a
        L, D = self.lab("POLL"), self.lab("POLLD")
        a(f"s_mov_b32 s{S_SPIN}, {SPIN_MAX}", f"{L}:")
        body()
        a(f"s_cbranch_vccz {D}")
        if sleep:
            a(f"s_sleep {sleep}")
        a(f"s_sub_u32 s{S_SPIN}, s{S_SPIN}, 1", f"s_cmp_lg_u32 s{S_SPIN}, 0", f"s_cbranch_scc1 {L}", f"{D}:")

    def prologue(self):
        a, cfg = self.a, self.cfg
        a("s_cmp_ge_u32 s2, 0x100", "s_cbranch_scc1 L_END")
        if cfg["stamps"]:
            a(f"s_memrealtime s[{S_ST}:{S_ST+1}]")
        a(f"s_load_dwordx2 s[{S_X}:{S_X+1}], s[0:1], 0",
          f"s_load_dwordx2 s[{S_W}:{S_W+1}], s[0:1], 8",
          f"s_load_dwordx2 s[{S_WS}:{S_WS+1}], s[0:1], 80",
          f"s_load_dwordx2 s[{S_WR}:{S_WR+1}], s[0:1], 32",
          f"s_load_dwordx2 s[{S_WO}:{S_WO+1}], s[0:1], 16",
          f"s_load_dwordx2 s[{S_OUT}:{S_OUT+1}], s[0:1], 64",
          f"s_load_dwordx2 s[{S_DN}:{S_DN+1}], s[0:1], 56",
          f"s_load_dwordx2 s[{S_F1}:{S_F1+1}], s[0:1], 40",
          f"s_load_dwordx2 s[{S_P2}:{S_P2+1}], s[0:1], 48")
        a(f"s_getpc_b64 s[{S_P}:{S_P+1}]", "L_PC:",
          "v_lshlrev_b32 v2, 7, v0", "v_min_u32 v2, L_END-L_PC, v2",
          f"global_load_dword v3, v2, s[{S_P}:{S_P+1}]")
        a("v_lshrrev_b32 v1, 6, v0", "v_and_b32 v0, 63, v0", f"v_readfirstlane_b32 s{S_WV}, v1")
        amb = cfg["amb"]; la = amb.bit_length() - 1; nx = 16 // amb; lnx = nx.bit_length() - 1; b = 32 // amb
        a(f"s_and_b32 s{S_T0}, s2, 7", f"s_lshr_b32 s{S_T1}, s2, 3")
        a(f"s_and_b32 s{S_MB}, s{S_T0}, {nx-1}", f"s_lshl_b32 s{S_MB}, s{S_MB}, {la}",
          f"s_and_b32 s{S_T2}, s{S_T1}, {amb-1}", f"s_add_u32 s{S_MB}, s{S_MB}, s{S_T2}")
        a(f"s_lshr_b32 s{S_J}, s{S_T0}, {lnx}", f"s_mul_i32 s{S_J}, s{S_J}, {b}",
          f"s_lshr_b32 s{S_T3}, s{S_T1}, {la}", f"s_add_u32 s{S_J}, s{S_J}, s{S_T3}")
        a(f"s_mov_b32 s{S_H}, s{S_J}")
        r = cfg["rot"]
        a(f"s_mul_i32 s{S_T2}, s{S_T2}, {r[0]}", f"s_mul_i32 s{S_T3}, s{S_T3}, {r[1]}",
          f"s_mul_i32 s{S_T0}, s{S_T0}, {r[2]}", f"s_add_u32 s{S_T4}, s{S_T2}, s{S_T3}",
          f"s_add_u32 s{S_T4}, s{S_T4}, s{S_T0}",
          f"s_mul_i32 s{S_T0}, s{S_T4}, 9363", f"s_lshr_b32 s{S_T0}, s{S_T0}, 16",
          f"s_mul_i32 s{S_T0}, s{S_T0}, 7", f"s_sub_u32 s{S_T4}, s{S_T4}, s{S_T0}")
        a(f"s_mov_b32 s{S_M28}, 0x0fffffff", f"s_mov_b32 s{S_M28+1}, 0x0fffffff",
          f"s_mov_b32 s{S_MLO}, -1", f"s_mov_b32 s{S_MLO+1}, 0")
        a(f"s_lshr_b32 s{S_TILE}, s{S_WV}, 1", f"s_and_b32 s{S_C}, s{S_WV}, 1")
        srd(a, S_X, 1835008); srd(a, S_W, 1204224); srd(a, S_WS, WS_SIZE); srd(a, S_WR, 896)
        srd(a, S_WO, 401408); srd(a, S_OUT, 1835008); srd(a, S_DN, 1605632); srd(a, S_F1, 1605632)
        a("v_and_b32 v4, 31, v0", "v_lshrrev_b32 v5, 5, v0")

    XF = 128
    ACC = 16
    WF = 32
    XR = 8
    WR_ = 12
    QRA = 13
    STT = 64
    STQ = 68
    XE = 72
    WE = 76
    SA = 80
    TMP = 84

    def read_addrs(self, late):
        a = self.a; T = self.TMP
        base = (L_Y - 2 * 4096) if late else L_X
        a(f"v_bfe_u32 v{T}, v4, 1, 3", f"v_xor_b32 v{T}, v{T}, v5", f"v_lshlrev_b32 v{T}, 4, v{T}",
          f"v_lshl_add_u32 v{T}, v4, 7, v{T}",
          f"s_lshl_b32 s{S_T0}, s{S_TILE}, 12", f"s_add_u32 s{S_T0}, s{S_T0}, {base}",
          f"v_add_u32 v{self.XR}, s{S_T0}, v{T}")
        for ss in range(1, 4):
            a(f"v_xor_b32 v{self.XR+ss}, {ss*32}, v{self.XR}")
        a(f"v_bfe_u32 v{T}, v0, 2, 2",
          f"v_lshl_add_u32 v{T+1}, v5, 3, v{T}",
          f"v_lshrrev_b32 v{T+2}, 1, v{T}", f"v_xor_b32 v{T+2}, s{S_C}, v{T+2}",
          f"v_lshlrev_b32 v{T+2}, 6, v{T+2}",
          f"v_lshl_add_u32 v{T+2}, v{T+1}, 7, v{T+2}",
          f"v_bfe_u32 v{T+3}, v0, 4, 1", f"v_and_b32 v{T+4}, 3, v0",
          f"v_lshl_add_u32 v{T+3}, v{T+3}, 2, v{T+4}",
          f"v_lshl_add_u32 v{self.WR_}, v{T+3}, 3, v{T+2}")
        a(f"v_cmp_lt_u32 vcc, 5, v{T+3}", f"v_xor_b32 v{T+4}, 1, v{T+3}",
          f"v_cndmask_b32 v{T+4}, v{T+3}, v{T+4}, vcc", f"v_lshlrev_b32 v{T+4}, 3, v{T+4}",
          f"v_lshl_add_u32 v{T+4}, v{T+1}, 6, v{T+4}", f"v_add_u32 v{self.QRA}, {L_WQ}, v{T+4}")

    def store_addrs(self, kind):
        a = self.a; T = self.TMP; SA = self.SA
        if kind == "K":
            a(f"s_lshl_b32 s{S_T0}, s{S_J}, 4", f"s_lshl_b32 s{S_T1}, s{S_C}, 3", f"s_add_u32 s{S_T0}, s{S_T0}, s{S_T1}",
              f"v_and_b32 v{T}, 0x13, v4", f"v_bfe_u32 v{T+1}, v4, 2, 1", f"v_lshl_or_b32 v{T}, v{T+1}, 3, v{T}",
              f"v_bfe_u32 v{T+1}, v4, 3, 1", f"v_lshl_or_b32 v{T}, v{T+1}, 2, v{T}",
              f"v_lshlrev_b32 v{T}, 3, v{T}", f"v_add_u32 v{T+1}, s{S_T0}, v5")
            for qd in range(4):
                a(f"v_add_u32 v{T+2}, {2*qd}, v{T+1}", f"v_mul_u32_u24 v{T+3}, 147, v{T+2}",
                  f"v_lshrrev_b32 v{T+3}, 10, v{T+3}",
                  f"v_mul_u32_u24 v{T+4}, {262144 - 7*256}, v{T+3}",
                  f"v_lshl_add_u32 v{T+4}, v{T+2}, 8, v{T+4}", f"v_add_u32 v{SA+qd}, v{T+4}, v{T}")
        else:
            a(f"s_lshl_b32 s{S_T0}, s{S_J}, 6", f"s_lshl_b32 s{S_T1}, s{S_C}, 5", f"s_add_u32 s{S_T0}, s{S_T0}, s{S_T1}",
              f"s_sub_u32 s{S_T0}, s{S_T0}, 448",
              f"v_add_u32 v{T}, s{S_T0}, v4", f"v_mul_u32_u24 v{T+1}, 2341, v{T}", f"v_lshrrev_b32 v{T+1}, 16, v{T+1}",
              f"v_mul_u32_u24 v{T+2}, {262144 - 28*16}, v{T+1}", f"v_lshl_add_u32 v{T+2}, v{T}, 4, v{T+2}",
              f"v_lshl_add_u32 v{SA}, v5, 9, v{T+2}")

    def mfma_kv(self, kind, step, wreg, first):
        x = vr(self.XF + 4 * step, 4); w = vr(wreg, 4); acc = vr(self.ACC, 16)
        c = "0" if first else acc
        if kind == "K":
            return f"v_mfma_f32_32x32x16_bf16 {acc}, {w}, {x}, {c}"
        return f"v_mfma_f32_32x32x16_bf16 {acc}, {x}, {w}, {c}"

    def rd_x(self, g, ss):
        return f"ds_read_b128 {vr(self.XF + 4*(4*g+ss), 4)}, v{self.XR+ss} offset:{g*8192}"

    def rd_w(self, step, wreg):
        return [f"ds_read_b64_tr_b16 {vr(wreg+2*rd, 2)}, v{self.WR_} offset:{step*2048 + rd*512}" for rd in range(2)]

    def rd_wq(self, step, wreg):
        return [f"ds_read_b64_tr_b16 {vr(wreg+2*rd, 2)}, v{self.QRA} offset:{step*1024 + rd*256}" for rd in range(2)]

    def stats_issue(self, dst, tile_sreg):
        a = self.a
        a(f"s_lshl_b32 s{S_STA}, s{S_MB}, 2", f"s_add_u32 s{S_STA}, s{S_STA}, s{tile_sreg}", f"s_lshl_b32 s{S_STA}, s{S_STA}, 9",
          f"s_add_u32 s{S_STA}, s{S_STA}, {WS_ST}", "v_lshlrev_b32 v126, 4, v4")
        a(f"buffer_load_dwordx4 {vr(dst,4)}, v126, s[{S_WS}:{S_WS+3}], s{S_STA} offen sc1")

    def stats_check(self, dst, wait):
        self.recheck(wait, [f"v_cmp_ne_u32 vcc, s{S_TAG}, v{dst+3}"],
                     [f"buffer_load_dwordx4 {vr(dst,4)}, v126, s[{S_WS}:{S_WS+3}], s{S_STA} offen sc1"])

    def recheck(self, wait, check, reload, rewait="s_waitcnt vmcnt(0)"):
        a = self.a
        L, D = self.lab("CHK"), self.lab("CHKD")
        a(wait, f"s_mov_b32 s{S_SPIN}, {SPIN_MAX}", f"{L}:")
        a(*check)
        a(f"s_cbranch_vccz {D}")
        a(*reload)
        a(f"s_sub_u32 s{S_SPIN}, s{S_SPIN}, 1", f"s_cmp_lg_u32 s{S_SPIN}, 0", rewait, f"s_cbranch_scc1 {L}", f"{D}:")

    def xext(self, st):
        a = self.a; XE = self.XE
        a(f"v_xor_b32 v{XE}, 0x80000000, v{st}", f"v_lshrrev_b32 v{XE+1}, 16, v{XE}", f"v_or_b32 v{XE}, v{XE}, v{XE+1}",
          "v_cmp_eq_u32 vcc, 0, v5", f"v_cndmask_b32 v{XE}, 0, v{XE}, vcc")
        for i in range(1, 4):
            a(f"v_mov_b32 v{XE+i}, v{XE}")

    def kv_epilogue(self, kind):
        a = self.a; T = self.TMP; ACC = self.ACC; WE = self.WE; XE = self.XE; SA = self.SA; ST = self.STT
        acc = vr(ACC, 16)
        a(f"s_lshl_b32 s{S_T0}, s{S_C}, 8", f"s_add_u32 s{S_T0}, s{S_T0}, {L_CS}",
          f"v_lshl_add_u32 v{T}, v4, 3, s{S_T0}", f"ds_read_b64 {vr(WE,2)}, v{T}",
          f"v_mov_b32 v{WE+2}, 0", f"v_mov_b32 v{WE+3}, 0")
        if kind == "V":
            a(f"s_lshl_b32 s{S_T0}, s{S_WV}, 7", f"s_add_u32 s{S_T0}, s{S_T0}, {L_RS}",
              f"v_lshl_add_u32 v{T+1}, v4, 2, s{S_T0}", f"ds_write_b32 v{T+1}, v{ST+1}",
              f"v_lshl_add_u32 v{T+2}, v5, 4, s{S_T0}")
            for q in range(4):
                a(f"ds_read_b128 {vr(T+4+4*q,4)}, v{T+2} offset:{32*q}")
            a("s_waitcnt lgkmcnt(5)", f"v_mfma_f32_32x32x16_bf16 {acc}, {vr(XE,4)}, {vr(WE,4)}, {acc}")
        else:
            a("s_waitcnt lgkmcnt(0)", f"v_mfma_f32_32x32x16_bf16 {acc}, {vr(WE,4)}, {vr(XE,4)}, {acc}")
        a(f"s_lshl_b32 s{S_T0}, s{S_MB}, 2", f"s_add_u32 s{S_T0}, s{S_T0}, s{S_TILE}",
          f"s_lshl_b32 s{S_T1}, s{S_T0}, 12", f"s_add_u32 s{S_T1}, s{S_T1}, {WS_KV}",
          f"s_lshl_b32 s{S_T0}, s{S_T0}, 5", f"s_lshl_b32 s{S_T2}, s{S_J}, 1", f"s_add_u32 s{S_T0}, s{S_T0}, s{S_T2}",
          f"s_add_u32 s{S_T0}, s{S_T0}, s{S_C}", f"s_lshl_b32 s{S_T0}, s{S_T0}, 7", f"s_add_u32 s{S_T5}, s{S_T0}, {WS_KF}")
        if kind == "V":
            a("s_waitcnt lgkmcnt(0)")
        P = T + 20
        for i in range(16):
            sc = f"v{ST+1}" if kind == "K" else f"v{T+4+i}"
            a(f"v_mul_f32 v{ACC+i}, v{ACC+i}, {sc}")
            if i % 2 == 1:
                a(f"v_cvt_pk_bf16_f32 v{P+i//2}, v{ACC+i-1}, v{ACC+i}")
        skip = self.lab("NOST")
        if kind == "V":
            a(f"s_cmp_ge_u32 s{S_J}, 14", f"s_cbranch_scc1 {skip}")
            for s in range(2):
                a(f"buffer_store_dwordx4 {vr(P+4*s,4)}, v{SA}, s[{S_WS}:{S_WS+3}], s{S_T1} offen offset:{2048+1024*s} sc1")
            a(f"{skip}:")
        else:
            for qd in range(4):
                a(f"buffer_store_dwordx2 {vr(P+2*qd,2)}, v{SA+qd}, s[{S_WS}:{S_WS+3}], s{S_T1} offen sc1")

    def kv_flag(self, wait, T):
        a = self.a
        a(f"v_mov_b32 v{T}, s{S_TAG}", f"v_mov_b32 v{T+1}, 0", wait, "s_mov_b64 exec, 1",
          f"buffer_store_dword v{T}, v{T+1}, s[{S_WS}:{S_WS+3}], s{S_T5} offen sc1", "s_mov_b64 exec, -1")

    def cs_pack(self, src, addr_v):
        a = self.a; T = self.TMP
        a(f"v_cvt_pk_bf16_f32 v{T+8}, v{src}, v{src}", f"v_and_b32 v{T+9}, 0xffff0000, v{T+8}",
          f"v_sub_f32 v{T+9}, v{src}, v{T+9}", f"v_cvt_pk_bf16_f32 v{T+8}, v{T+9}, v{src}",
          f"ds_write_b32 v{addr_v}, v{T+8}")

    def p0(self):
        a = self.a; T = self.TMP
        X = 96; Wr = 104
        a("s_waitcnt lgkmcnt(0)")
        a(f"s_load_dword s{S_TAG}, s[{S_WS}:{S_WS+1}], {WS_EPOCH}")
        a(f"s_lshl_b32 s{S_T0}, s{S_MB}, 7", f"s_lshl_b32 s{S_T1}, s{S_J}, 3", f"s_add_u32 s{S_T0}, s{S_T0}, s{S_T1}",
          f"s_lshl_b32 s{S_T1}, s{S_WV}, 1", f"s_add_u32 s{S_T5}, s{S_T0}, s{S_T1}", f"s_mul_i32 s{S_T1}, s{S_T5}, 896",
          f"v_lshlrev_b32 v{T}, 4, v4", f"v_mul_u32_u24 v{T+1}, 896, v5", f"v_add_u32 v{T+1}, v{T+1}, v{T}")
        for i in range(16):
            a(f"v_mov_b32 v{X+i}, 0")
        a(f"s_mov_b64 exec, s[{S_M28}:{S_M28+1}]")
        for i in range(2):
            a(f"buffer_load_dwordx4 {vr(X+4*i,4)}, v{T+1}, s[{S_X}:{S_X+3}], s{S_T1} offen offset:{448*i}")
        for i in range(2):
            a(f"buffer_load_dwordx4 {vr(Wr+4*i,4)}, v{T}, s[{S_WR}:{S_WR+3}], 0 offen offset:{448*i}")
        a("s_mov_b64 exec, -1")

    def p0_compute(self):
        a = self.a; T = self.TMP
        X = 96; Wr = 104; A = 112
        a(f"v_mov_b32 v{A+4}, 0x3f803f80")
        for i in range(4):
            a(f"v_mov_b32 v{A+i}, 0")
        a("s_waitcnt vmcnt(0)")
        for i in range(8):
            a(f"v_dot2c_f32_bf16 v{A}, v{X+i}, v{A+4}", f"v_dot2c_f32_bf16 v{A+1}, v{X+i}, v{X+i}",
              f"v_dot2c_f32_bf16 v{A+2}, v{X+i}, v{Wr+i}", f"v_dot2c_f32_bf16 v{A+3}, v{Wr+i}, v{A+4}")
        for m in ("row_shr:1", "row_shr:2", "row_shr:4", "row_shr:8"):
            for i in range(4):
                a(f"v_add_f32_dpp v{A+i}, v{A+i}, v{A+i} {m} row_mask:0xf bank_mask:0xf")
        for i in range(4):
            a(f"v_add_f32_dpp v{A+i}, v{A+i}, v{A+i} row_bcast:15 row_mask:0xa bank_mask:0xf")
        G = 116
        inv = "0x3b124925"
        a(f"v_mul_f32 v{A}, {inv}, v{A}", f"v_mul_f32 v{A+1}, {inv}, v{A+1}",
          f"v_fma_f32 v{A+1}, -v{A}, v{A}, v{A+1}", f"v_max_f32 v{A+1}, 0, v{A+1}",
          f"v_cvt_pk_bf16_f32 v{T}, v{A}, v{A+1}",
          f"v_lshlrev_b32 v{G}, 16, v{T}", f"v_and_b32 v{T}, 0xffff0000, v{T}",
          f"v_add_f32 v{T}, 0x3727c5ac, v{T}", f"v_cvt_pk_bf16_f32 v{T}, v{T}, v{T}", f"v_and_b32 v{T}, 0xffff0000, v{T}",
          f"v_sqrt_f32 v{T}, v{T}", f"v_cvt_pk_bf16_f32 v{T}, v{T}, v{T}", f"v_and_b32 v{T}, 0xffff0000, v{T}",
          f"v_rcp_f32 v{G+1}, v{T}",
          f"v_fma_f32 v{A+2}, -v{G}, v{A+3}, v{A+2}", f"v_mul_f32 v{G+2}, v{A+2}, v{G+1}")
        a("s_waitcnt lgkmcnt(0)", f"s_mul_i32 s{S_TAG}, s{S_TAG}, 0x9e3779b1", f"s_add_u32 s{S_TAG}, s{S_TAG}, 0x7f4a7c15",
          f"v_mov_b32 v{G+3}, s{S_TAG}",
          f"s_lshl_b32 s{S_T1}, s{S_T5}, 4", f"s_add_u32 s{S_T1}, s{S_T1}, {WS_ST}", f"v_lshlrev_b32 v{T}, 4, v5",
          "s_mov_b32 exec_lo, 0x80000000", "s_mov_b32 exec_hi, 0x80000000",
          f"buffer_store_dwordx4 {vr(G,4)}, v{T}, s[{S_WS}:{S_WS+3}], s{S_T1} offen sc1",
          "s_mov_b64 exec, -1")
        a(f"v_mov_b32 v{T}, {L_TAG}", f"ds_write_b32 v{T}, v{G+3}",
          f"v_lshlrev_b32 v{T+1}, 2, v4", f"v_mov_b32 v{T+2}, 0", f"v_add_u32 v{T+1}, {L_RFLAG}, v{T+1}",
          f"ds_write_b32 v{T+1}, v{T+2}")

    def p1_early(self, kind):
        a = self.a; WF = self.WF; T = self.TMP
        self.store_addrs(kind)
        self.p0_compute()
        self.stamp(1)
        for g in range(7):
            a("s_waitcnt lgkmcnt(0)", "s_barrier")
            if g == 0:
                self.stamp(2)
            for ss in range(4):
                a(self.rd_x(g, ss), *self.rd_w(4 * g + ss, WF + 4 * ss))
            for ss in range(4):
                a(f"s_waitcnt lgkmcnt({9-3*ss})", self.mfma_kv(kind, 4 * g + ss, WF + 4 * ss, g == 0 and ss == 0))
            if g == 4:
                self.stats_issue(self.STT, S_TILE)
        self.stats_check(self.STT, "s_waitcnt vmcnt(0)")
        self.xext(self.STT)
        self.stamp(3)
        self.kv_epilogue(kind)
        a("s_barrier")
        skip = self.lab("QOWN")
        a(f"s_lshl_b32 s{S_T0}, s{S_C}, 1", f"s_add_u32 s{S_QB}, s{S_TILE}, s{S_T0}")
        self.stats_issue(self.STQ, S_QB)
        a(f"s_cmp_eq_u32 s{S_C}, 0", f"s_cbranch_scc1 {skip}")
        for ss in range(4):
            a(f"v_subrev_u32 v{self.XR+ss}, {L_X-L_Y}, v{self.XR+ss}")
        for g in range(7):
            for ss in range(4):
                a(self.rd_x(g, ss))
            if g % 2 == 1:
                a("s_waitcnt lgkmcnt(4)")
        a(f"{skip}:")
        self.kv_flag("s_waitcnt vmcnt(1)", T)
        self.stamp(4)
        a("s_branch L_QEARLY")

    def q_early(self):
        a = self.a; WF = self.WF; T = self.TMP; ACC = self.ACC; acc = vr(ACC, 16)
        a("L_QEARLY:")
        self.stats_check(self.STQ, "s_waitcnt vmcnt(1)")
        self.xext(self.STQ)
        def rd(g):
            for ss in range(4):
                a(*self.rd_wq(4 * g + ss, WF + 16 * (g % 2) + 4 * ss))
        def mm(g, pend):
            for ss in range(4):
                a(f"s_waitcnt lgkmcnt({pend + 6 - 2*ss})")
                c = "0" if (g == 0 and ss == 0) else acc
                a(f"v_mfma_f32_32x32x16_bf16 {acc}, {vr(WF+16*(g%2)+4*ss,4)}, {vr(self.XF+4*(4*g+ss),4)}, {c}")
        a("s_waitcnt lgkmcnt(0)", "s_barrier")
        rd(0)
        for g in range(3):
            rd(g + 1); mm(g, 8)
        mm(3, 0)
        a("s_barrier")
        rd(4); rd(5); mm(4, 8); rd(6); mm(5, 8); mm(6, 0)
        a("s_barrier")
        a(f"v_lshlrev_b32 v{T}, 4, v4", f"v_add_u32 v{T}, {L_CSQ}, v{T}", f"ds_read_b128 {vr(self.WE,4)}, v{T}",
          f"v_mul_f32 v{self.STQ+1}, 0x3e8b97f6, v{self.STQ+1}",
          f"s_lshl_b32 s{S_T0}, s{S_QB}, 11", f"s_add_u32 s{S_T0}, s{S_T0}, {L_QL}",
          f"v_lshl_add_u32 v{T+1}, v0, 4, s{S_T0}",
          "s_waitcnt lgkmcnt(0)",
          f"v_mfma_f32_32x32x16_bf16 {acc}, {vr(self.WE,4)}, {vr(self.XE,4)}, {acc}")
        P = T + 20
        for i in range(16):
            a(f"v_mul_f32 v{ACC+i}, v{ACC+i}, v{self.STQ+1}")
            if i % 2 == 1:
                a(f"v_cvt_pk_bf16_f32 v{P+i//2}, v{ACC+i-1}, v{ACC+i}")
        a("v_cmp_eq_u32 vcc, 0, v5", f"v_cndmask_b32 v{P+6}, 0, v{P+6}, vcc", f"v_cndmask_b32 v{P+7}, 0, v{P+7}, vcc",
          f"ds_write_b128 v{T+1}, {vr(P,4)}", f"ds_write_b128 v{T+1}, {vr(P+4,4)} offset:1024",
          "s_branch L_QDONE")

    def loader_setup(self):
        a = self.a; T = self.TMP
        for kc in range(7):
            a(f"s_add_u32 s{S_T0}, s{S_T4}, {kc}", f"s_cmp_ge_u32 s{S_T0}, 7", f"s_cselect_b32 s{S_T1}, 7, 0",
              f"s_sub_u32 s{S_T0}, s{S_T0}, s{S_T1}", f"s_lshl_b32 s{S_RX+kc}, s{S_T0}, 7",
              f"s_mul_i32 s{S_RW+kc}, s{S_T0}, {64*2688}")
        a(f"s_and_b32 s{S_T2}, s{S_WV}, 3",
          f"v_lshrrev_b32 v{T}, 3, v0", f"v_and_b32 v{T+1}, 7, v0",
          f"v_bfe_u32 v{T+2}, v0, 4, 1", f"v_lshlrev_b32 v{T+2}, 2, v{T+2}", f"v_xor_b32 v{T+2}, v{T+2}, v{T+1}",
          f"v_lshlrev_b32 v{T+2}, 4, v{T+2}", f"v_mul_u32_u24 v14, 2688, v{T}", f"v_add_u32 v14, v14, v{T+2}",
          f"v_lshrrev_b32 v{T+2}, 4, v0", f"s_lshl_b32 s{S_T0}, s{S_C}, 2", f"v_or_b32 v{T+2}, s{S_T0}, v{T+2}",
          f"v_xor_b32 v{T+2}, v{T+2}, v{T+1}", f"v_lshlrev_b32 v{T+2}, 4, v{T+2}",
          f"v_mul_u32_u24 v15, 896, v{T}", f"v_add_u32 v15, v15, v{T+2}")
        a(f"s_min_u32 s{S_T0}, s{S_J}, 13", f"s_lshl_b32 s{S_T0}, s{S_T0}, 7", f"s_mul_i32 s{S_T1}, s{S_T2}, {8*2688}",
          f"s_add_u32 s{S_WB}, s{S_T0}, s{S_T1}", f"s_add_u32 s{S_WB}, s{S_WB}, 896",
          f"s_mul_i32 s{S_T0}, s{S_MB}, {128*896}", f"s_mul_i32 s{S_T1}, s{S_T2}, {8*896}", f"s_add_u32 s{S_XB}, s{S_T0}, s{S_T1}",
          f"s_lshl_b32 s{S_LB}, s{S_T2}, 10")
        a("s_waitcnt lgkmcnt(0)")

    def dma_unit(self, vm, u):
        a = self.a
        k, g = u
        for half in range(2):
            if k == "W":
                a(f"s_add_u32 m0, s{S_LB}, {L_W + g*8192 + half*4096}")
                if half == 0:
                    a(f"s_add_u32 s{S_T0}, s{S_WB}, s{S_RW+g}")
                else:
                    a(f"s_add_u32 s{S_T0}, s{S_T0}, {32*2688}")
                a(f"buffer_load_dwordx4 v14, s[{S_W}:{S_W+3}], s{S_T0} offen lds")
            else:
                base = L_X if k == "x" else L_Y
                a(f"s_add_u32 m0, s{S_LB}, {base + g*8192 + half*4096}")
                if half == 0:
                    a(f"s_add_u32 s{S_T0}, s{S_XB}, s{S_RX+g}")
                    if k == "y":
                        a(f"s_add_u32 s{S_T0}, s{S_T0}, {64*896}")
                else:
                    a(f"s_add_u32 s{S_T0}, s{S_T0}, {32*896}")
                a(f"buffer_load_dwordx4 v15, s[{S_X}:{S_X+3}], s{S_T0} offen lds")
            vm.add(u)

    UNITS = [("W", 0), ("x", 0), ("W", 1), ("W", 2), ("x", 1), ("W", 3), ("x", 2), ("W", 4), ("x", 3), ("W", 5),
             ("x", 4), ("W", 6), ("x", 5), ("x", 6)] + [("y", g) for g in range(7)]

    def p1_late_common(self):
        a = self.a; WF = self.WF; T = self.TMP; U = self.UNITS; win = self.cfg["win"]
        vm = VM(["pc"])
        self.loader_setup()
        nxt = 0
        while nxt <= 1 + win - 1:
            self.dma_unit(vm, U[nxt]); nxt += 1
        self.read_addrs(True)
        ONE = 120
        for i in range(4):
            a(f"v_mov_b32 v{ONE+i}, 0x3f803f80")
        a(f"s_and_b32 s{S_T0}, s{S_TILE}, 1", f"s_lshl_b32 s{S_T1}, s{S_T0}, 11", f"v_add_u32 v6, s{S_T1}, v{self.WR_}",
          f"s_lshl_b32 s{S_T0}, s{S_T0}, 2", f"s_lshl_b32 s{S_T1}, s{S_C}, 8", f"s_add_u32 s{S_T0}, s{S_T0}, s{S_T1}",
          f"s_add_u32 s{S_T0}, s{S_T0}, {L_CS}", f"v_lshl_add_u32 v124, v4, 3, s{S_T0}")
        a(f"v_lshrrev_b32 v{T}, 2, v0", f"v_and_b32 v{T+1}, 3, v0", f"v_lshlrev_b32 v{T+1}, 4, v{T+1}",
          f"v_min_u32 v{T+1}, 40, v{T+1}", f"v_mul_u32_u24 v7, 2688, v{T}", f"v_add_u32 v7, v7, v{T+1}")
        CSA = vr(self.ACC, 16)
        first = [True]
        def cs(g):
            for i in range(2):
                for rd in range(2):
                    a(f"ds_read_b64_tr_b16 {vr(WF+4*i+2*rd,2)}, v6 offset:{(4*g+2*i)*2048 + rd*512}")
            for i in range(2):
                a(f"s_waitcnt lgkmcnt({2-2*i})",
                  f"v_mfma_f32_32x32x16_bf16 {CSA}, {vr(ONE,4)}, {vr(WF+4*i,4)}, {'0' if first[0] else CSA}")
                first[0] = False
        for g in range(7):
            need = U.index(("x", g))
            a(vm.wait(("x", g)), "s_barrier")
            while nxt <= min(need + win, len(U) - 1) or (g == 6 and nxt < len(U)):
                self.dma_unit(vm, U[nxt]); nxt += 1
            if g == 0:
                a(f"v_mov_b32 v{T}, {L_TAG}", f"ds_read_b32 v{T}, v{T}", "s_waitcnt lgkmcnt(0)",
                  f"v_readfirstlane_b32 s{S_TAG}, v{T}")
                cs(0)
            elif g == 1:
                cs(1); cs(2)
            elif g <= 5:
                cs(g + 1)
            if g == 5:
                self.cs_pack(self.ACC, 124)
                a("s_waitcnt lgkmcnt(0)")
        self.stats_issue(self.STT, S_TILE)
        vm.add("st")
        a(f"s_and_b32 s{S_T2}, s{S_WV}, 3", f"s_mul_i32 s{S_T1}, s{S_T2}, {16*2688}", f"s_mul_i32 s{S_T0}, s{S_H}, 56",
          f"s_add_u32 s{S_WB}, s{S_T0}, s{S_T1}")
        for g in range(7):
            a(f"s_add_u32 m0, s{S_LB}, {L_WQ + g*4096}", f"s_add_u32 s{S_T0}, s{S_WB}, s{S_RW+g}",
              f"buffer_load_dwordx4 v7, s[{S_W}:{S_W+3}], s{S_T0} offen lds")
            vm.add(("q", g))
        self.vm_late = vm

    def p1_late(self, kind):
        a = self.a; WF = self.WF; T = self.TMP
        vm = self.vm_late.copy()
        self.store_addrs(kind)
        a(vm.wait(("y", 6)), "s_barrier")
        def rd(g):
            for ss in range(4):
                a(self.rd_x(g, ss), *self.rd_w(4 * g + ss, WF + 16 * (g % 2) + 4 * ss))
        rd(0)
        for g in range(7):
            for ss in range(4):
                if g < 6:
                    a(f"s_waitcnt lgkmcnt(9)")
                else:
                    a(f"s_waitcnt lgkmcnt({9-3*ss})")
                a(self.mfma_kv(kind, 4 * g + ss, WF + 16 * (g % 2) + 4 * ss, g == 0 and ss == 0))
                if g < 6:
                    a(self.rd_x(g + 1, ss), *self.rd_w(4 * (g + 1) + ss, WF + 16 * ((g + 1) % 2) + 4 * ss))
        self.stats_check(self.STT, vm.wait(("q", 3)))
        a("s_barrier")
        self.xext(self.STT)
        self.kv_epilogue(kind)
        if kind == "K":
            for _ in range(4): vm.add("kv")
            a(vm.wait(("q", 6)))
        else:
            w0, w1 = self.lab("WQ"), self.lab("WQ")
            a(f"s_cmp_ge_u32 s{S_J}, 14", f"s_cbranch_scc1 {w0}", "s_waitcnt vmcnt(2)", f"s_branch {w1}", f"{w0}:",
              "s_waitcnt vmcnt(0)", f"{w1}:")
        a("s_barrier")
        ONE = 120; C2 = vr(self.ACC, 16)
        a(f"v_add_u32 v6, s{S_LB}, v{self.QRA}")
        for g in range(7):
            for rd_ in range(2):
                a(f"ds_read_b64_tr_b16 {vr(WF+4*g+2*rd_,2)}, v6 offset:{g*4096 + rd_*256}")
        a(f"s_lshr_b32 s{S_T0}, s{S_LB}, 8", f"s_add_u32 s{S_T0}, s{S_T0}, {L_CSQ}", f"v_lshl_add_u32 v124, v4, 4, s{S_T0}")
        for g in range(7):
            a(f"s_waitcnt lgkmcnt({12-2*g})", f"v_mfma_f32_32x32x16_bf16 {C2}, {vr(ONE,4)}, {vr(WF+4*g,4)}, {'0' if g == 0 else C2}")
        self.cs_pack(self.ACC, 124)
        a("s_waitcnt lgkmcnt(0)", "s_barrier")
        a("s_branch L_QDONE")

    def p1(self):
        a = self.a
        a(f"s_cmp_ge_u32 s{S_WV}, 4", "s_cbranch_scc1 L_LATE")
        self.p0()
        self.read_addrs(False)
        a(f"s_cmp_ge_u32 s{S_J}, 7", "s_cbranch_scc1 L_EARLY_V")
        self.p1_early("K")
        a("L_EARLY_V:")
        self.p1_early("V")
        a("L_LATE:")
        self.p1_late_common()
        a(f"s_cmp_ge_u32 s{S_J}, 7", "s_cbranch_scc1 L_LATE_V")
        self.p1_late("K")
        a("L_LATE_V:")
        self.p1_late("V")
        self.q_early()
        a("L_QDONE:", "s_waitcnt lgkmcnt(0)", "s_barrier")
        self.stamp(5)

    def wave_max(self, v):
        a = self.a
        for m in ("row_shr:1", "row_shr:2", "row_shr:4", "row_shr:8"):
            a(f"v_max_u32_dpp v{v}, v{v}, v{v} {m} row_mask:0xf bank_mask:0xf")
        a(f"v_max_u32_dpp v{v}, v{v}, v{v} row_bcast:15 row_mask:0xa bank_mask:0xf",
          f"v_max_u32_dpp v{v}, v{v}, v{v} row_bcast:31 row_mask:0xc bank_mask:0xf")

    def top2_wave(self, m1, m2, t, s1, s2):
        a = self.a
        a(f"v_mov_b32 v{t}, v{m1}")
        self.wave_max(t)
        a(f"v_readlane_b32 s{s1}, v{t}, 63", f"v_cmp_eq_u32 vcc, s{s1}, v{m1}", f"v_cndmask_b32 v{t}, v{m1}, v{m2}, vcc")
        self.wave_max(t)
        a(f"v_readlane_b32 s{s2}, v{t}, 63")

    def unpack_norm(self, src, n, m, rs, t):
        a = self.a
        for i in range(n):
            a(f"v_lshlrev_b32 v{t}, 16, v{src+i}", f"v_and_b32 v{t+1}, 0xffff0000, v{src+i}",
              f"v_sub_f32 v{t}, v{t}, v{m}", f"v_sub_f32 v{t+1}, v{t+1}, v{m}",
              f"v_cvt_pk_bf16_f32 v{src+i}, v{t}, v{t+1}",
              f"v_lshlrev_b32 v{t}, 16, v{src+i}", f"v_and_b32 v{t+1}, 0xffff0000, v{src+i}",
              f"v_mul_f32 v{t}, v{t}, v{rs}", f"v_mul_f32 v{t+1}, v{t+1}, v{rs}",
              f"v_cvt_pk_bf16_f32 v{src+i}, v{t}, v{t+1}")

    def selector(self):
        a = self.a; T = 200
        ws = f"s[{S_WS}:{S_WS+3}]"
        a(f"s_cmp_lg_u32 s2, {self.cfg['sel_id']}", "s_cbranch_scc1 L_NOSEL")
        a(f"s_lshl_b32 s{S_T0}, s{S_WV}, 6", f"v_add_u32 v{T}, s{S_T0}, v0", f"v_lshlrev_b32 v{T+1}, 4, v{T}")
        def body():
            for i in range(4):
                a(f"s_mov_b32 s{S_T0}, {WS_ST + 8 + i*8192}",
                  f"buffer_load_dwordx2 {vr(T+2+2*i,2)}, v{T+1}, {ws}, s{S_T0} offen sc1")
            a("s_waitcnt vmcnt(0)", f"v_cmp_ne_u32 vcc, s{S_TAG}, v{T+3}")
            for i in range(1, 4):
                a(f"v_cmp_ne_u32 s[{S_P}:{S_P+1}], s{S_TAG}, v{T+3+2*i}", f"s_or_b64 vcc, vcc, s[{S_P}:{S_P+1}]")
        self.poll(body)
        for i in range(4):
            r = T + 2 + 2 * i
            a(f"v_ashrrev_i32 v{r+1}, 31, v{r}", f"v_or_b32 v{r+1}, 0x80000000, v{r+1}", f"v_xor_b32 v{r}, v{r}, v{r+1}",
              f"v_and_b32 v{r}, 0xfffff800, v{r}", f"v_sub_u32 v{r+1}, {2047 - 512*i}, v{T}", f"v_or_b32 v{r}, v{r}, v{r+1}")
        k = [T + 2, T + 4, T + 6, T + 8]
        a(f"v_max_u32 v{T+10}, v{k[0]}, v{k[1]}", f"v_min_u32 v{T+11}, v{k[0]}, v{k[1]}",
          f"v_max_u32 v{T+12}, v{k[2]}, v{k[3]}", f"v_min_u32 v{T+13}, v{k[2]}, v{k[3]}",
          f"v_max_u32 v{T+14}, v{T+10}, v{T+12}", f"v_min_u32 v{T+15}, v{T+10}, v{T+12}",
          f"v_max3_u32 v{T+15}, v{T+15}, v{T+11}, v{T+13}")
        self.top2_wave(T + 14, T + 15, T + 16, S_T1, S_T2)
        a(f"v_mov_b32 v{T+2}, s{S_T1}", f"v_mov_b32 v{T+3}, s{S_T2}", f"s_lshl_b32 s{S_T0}, s{S_WV}, 3",
          f"s_add_u32 s{S_T0}, s{S_T0}, {L_SEL}", f"v_mov_b32 v{T+4}, s{S_T0}", f"ds_write_b64 v{T+4}, {vr(T+2,2)}",
          "s_waitcnt lgkmcnt(0)", "s_barrier",
          f"s_cmp_lg_u32 s{S_WV}, 0", "s_cbranch_scc1 L_NOSEL")
        a(f"v_and_b32 v{T+4}, 7, v0", f"v_lshlrev_b32 v{T+4}, 3, v{T+4}", f"v_add_u32 v{T+4}, {L_SEL}, v{T+4}",
          f"ds_read_b64 {vr(T+14,2)}, v{T+4}", "s_waitcnt lgkmcnt(0)")
        self.top2_wave(T + 14, T + 15, T + 16, S_T1, S_T2)
        for s_ in (S_T1, S_T2):
            a(f"s_and_b32 s{s_}, s{s_}, 0x7ff", f"s_sub_u32 s{s_}, 0x7ff, s{s_}")
        X0, X1, G0, G1 = T + 4, T + 8, T + 12, T + 16
        a(f"v_min_u32 v{T+1}, 55, v0", f"v_lshlrev_b32 v{T+1}, 4, v{T+1}", f"v_mov_b32 v{T+2}, {WS_ST}")
        for s_, X, G in ((S_T1, X0, G0), (S_T2, X1, G1)):
            a(f"s_mul_i32 s{S_T0}, s{s_}, 896", f"buffer_load_dwordx4 {vr(X,4)}, v{T+1}, s[{S_X}:{S_X+3}], s{S_T0} offen",
              f"s_lshl_b32 s{S_T0}, s{s_}, 4", f"buffer_load_dwordx4 {vr(G,4)}, v{T+2}, {ws}, s{S_T0} offen sc1")
        a("s_waitcnt vmcnt(0)")
        self.unpack_norm(X0, 4, G0, G0 + 1, T + 20)
        self.unpack_norm(X1, 4, G1, G1 + 1, T + 20)
        O = T + 24
        a(f"v_lshlrev_b32 v{T+1}, 2, v{T+1}", f"s_mov_b32 s{S_T0}, {WS_XS}")
        for i in range(4):
            a(f"v_mov_b32 v{O+4*i}, v{X0+i}", f"v_mov_b32 v{O+4*i+1}, v{X1+i}", f"v_mov_b32 v{O+4*i+2}, s{S_TAG}",
              f"v_mov_b32 v{O+4*i+3}, 0",
              f"buffer_store_dwordx4 {vr(O+4*i,4)}, v{T+1}, {ws}, s{S_T0} offen offset:{16*i} sc1")
        H = T + 40
        a(f"v_cvt_pk_bf16_f32 v{T+20}, v{G0+2}, v{G1+2}", f"v_lshlrev_b32 v{T+21}, 16, v{T+20}",
          f"v_and_b32 v{T+22}, 0xffff0000, v{T+20}")
        for r in (T + 21, T + 22):
            a(f"v_mul_f32 v{r}, 0xbfb8aa3b, v{r}", f"v_exp_f32 v{r}, v{r}", f"v_add_f32 v{r}, 1.0, v{r}", f"v_rcp_f32 v{r}, v{r}")
        a(f"v_cvt_pk_bf16_f32 v{H+2}, v{T+21}, v{T+22}", f"v_mov_b32 v{H}, s{S_T1}", f"v_mov_b32 v{H+1}, s{S_T2}",
          f"v_mov_b32 v{H+3}, s{S_TAG}", f"v_mov_b32 v{T+2}, {WS_SELH}", "s_mov_b64 exec, 1",
          f"buffer_store_dwordx4 {vr(H,4)}, v{T+2}, {ws}, 0 offen sc1", "s_mov_b64 exec, -1")
        a("L_NOSEL:")

    def ffn_ids(self):
        a = self.a
        a(f"s_and_b32 s{S_T0}, s2, 7", f"s_mul_i32 s{S_T0}, s{S_T0}, 14", f"s_lshr_b32 s{S_T1}, s2, 4",
          f"s_add_u32 s{S_JOB}, s{S_T0}, s{S_T1}")

    def ffn_dma(self, srd_, stride, nstep, lds, soff, T):
        a = self.a
        a(f"v_lshrrev_b32 v{T}, 2, v0", f"v_mul_u32_u24 v{T}, {stride}, v{T}", f"v_and_b32 v{T+1}, 3, v0",
          f"v_lshl_add_u32 v{T}, v{T+1}, 4, v{T}")
        for p in range(nstep):
            a(f"s_mov_b32 m0, {lds + p*1024}")
            if p:
                a(f"s_add_u32 s{soff}, s{soff}, {16*stride}")
            a(f"buffer_load_dwordx4 v{T}, s[{srd_}:{srd_+3}], s{soff} offen lds")

    def ffn_mm(self, nstep, lds, bnc, rowb, T):
        a = self.a
        AA, BA, F = T + 16, T + 17, T + 18
        acc = vr(T, 16)
        a(f"v_and_b32 v{AA}, 1, v0", f"v_mul_u32_u24 v{AA}, {rowb}, v{AA}", f"v_lshl_add_u32 v{AA}, v5, 4, v{AA}",
          f"v_add_u32 v{AA}, {bnc}, v{AA}",
          f"v_bfe_u32 v{BA}, v0, 2, 2", f"v_lshl_add_u32 v{BA}, v5, 3, v{BA}", f"v_lshlrev_b32 v{BA}, 6, v{BA}",
          f"v_bfe_u32 v{F}, v0, 4, 1", f"v_lshl_add_u32 v{BA}, v{F}, 5, v{BA}", f"v_and_b32 v{F}, 3, v0",
          f"v_lshl_add_u32 v{BA}, v{F}, 3, v{BA}", f"v_add_u32 v{BA}, {lds}, v{BA}")
        p = 0
        while p < nstep:
            n = min(4, nstep - p)
            for i in range(n):
                a(f"ds_read_b128 {vr(F+8*i,4)}, v{AA} offset:{(p+i)*32}")
                for rd in range(2):
                    a(f"ds_read_b64_tr_b16 {vr(F+8*i+4+2*rd,2)}, v{BA} offset:{(p+i)*1024 + rd*256}")
            for i in range(n):
                a(f"s_waitcnt lgkmcnt({3*(n-1-i)})",
                  f"v_mfma_f32_32x32x16_bf16 {acc}, {vr(F+8*i,4)}, {vr(F+8*i+4,4)}, {'0' if p+i == 0 else acc}")
            p += n

    def st1_dma(self, T):
        a = self.a
        a(f"s_cmp_ge_u32 s{S_JOB}, 56", f"s_cselect_b32 s{S_F1}, s{S_P2}, s{S_F1}", f"s_cselect_b32 s{S_F1+1}, s{S_P2+1}, s{S_F1+1}",
          f"s_cselect_b32 s{S_T0}, 56, 0", f"s_sub_u32 s{S_T0}, s{S_JOB}, s{S_T0}",
          f"s_cmp_ge_u32 s{S_T0}, 28", f"s_cselect_b32 s{S_T1}, {224*3584 - 28*128}, 0", f"s_lshl_b32 s{S_T0}, s{S_T0}, 7",
          f"s_add_u32 s{S_T0}, s{S_T0}, s{S_T1}", f"s_and_b32 s{S_T1}, s2, 8", f"s_lshl_b32 s{S_T1}, s{S_T1}, 3",
          f"s_add_u32 s{S_T0}, s{S_T0}, s{S_T1}")
        self.ffn_dma(S_F1, 3584, 14, L_F1, S_T0, T)

    def st1(self, T):
        a = self.a; ws = f"s[{S_WS}:{S_WS+3}]"
        a(f"s_mul_i32 s{S_T0}, s{S_JOB}, 2341", f"s_lshr_b32 s{S_T3}, s{S_T0}, 16",
          f"s_and_b32 s{S_T0}, s{S_T3}, 1", f"s_mul_i32 s{S_T0}, s{S_T0}, {112*16}", f"s_add_u32 s{S_T0}, s{S_T0}, {WS_XS}",
          f"v_min_u32 v{T+16}, 55, v0", f"v_lshlrev_b32 v{T+17}, 4, v{T+16}")
        def body():
            a(f"buffer_load_dwordx4 {vr(T,4)}, v{T+17}, {ws}, s{S_T0} offen sc1",
              f"buffer_load_dwordx4 {vr(T+4,4)}, v{T+17}, {ws}, s{S_T0} offen offset:896 sc1", "s_waitcnt vmcnt(0)",
              f"v_cmp_ne_u32 vcc, s{S_TAG}, v{T+2}", f"v_cmp_ne_u32 s[{S_P}:{S_P+1}], s{S_TAG}, v{T+6}",
              f"s_or_b64 vcc, vcc, s[{S_P}:{S_P+1}]")
        self.poll(body, sleep=4)
        a(f"v_lshlrev_b32 v{T+16}, 2, v{T+16}", f"v_add_u32 v{T+16}, {L_BNC}, v{T+16}",
          f"ds_write_b32 v{T+16}, v{T}", f"ds_write_b32 v{T+16}, v{T+1} offset:448",
          f"ds_write_b32 v{T+16}, v{T+4} offset:224", f"ds_write_b32 v{T+16}, v{T+5} offset:672")
        self.ffn_mm(14, L_F1, L_BNC, 448, T)
        a(f"s_lshl_b32 s{S_T0}, s{S_JOB}, 10", f"s_and_b32 s{S_T1}, s2, 8", f"s_lshl_b32 s{S_T1}, s{S_T1}, 6",
          f"s_add_u32 s{S_T0}, s{S_T0}, s{S_T1}", f"s_add_u32 s{S_T0}, s{S_T0}, {WS_PRE}",
          f"v_mov_b32 v{T+2}, s{S_TAG}", f"s_mov_b64 exec, s[{S_MLO}:{S_MLO+1}]",
          f"buffer_store_dwordx4 {vr(T,4)}, v6, {ws}, s{S_T0} offen sc1", "s_mov_b64 exec, -1")

    def st2_dma(self, T):
        a = self.a
        a(f"s_mul_i32 s{S_T0}, s{S_JOB}, 9363", f"s_lshr_b32 s{S_T0}, s{S_T0}, 16",
          f"s_mul_i32 s{S_T0}, s{S_T0}, {112*896 - 7*128}", f"s_lshl_b32 s{S_T1}, s{S_JOB}, 7", f"s_add_u32 s{S_T0}, s{S_T0}, s{S_T1}",
          f"s_and_b32 s{S_T1}, s2, 8", f"s_lshl_b32 s{S_T1}, s{S_T1}, 3", f"s_add_u32 s{S_T0}, s{S_T0}, s{S_T1}")
        self.ffn_dma(S_DN, 896, 7, L_F2, S_T0, T)

    def silu(self, x, t):
        self.a(f"v_mul_f32 v{t}, 0xbfb8aa3b, v{x}", f"v_exp_f32 v{t}, v{t}", f"v_add_f32 v{t}, 1.0, v{t}",
               f"v_rcp_f32 v{t}, v{t}", f"v_mul_f32 v{x}, v{x}, v{t}")

    def st2(self, T):
        a = self.a; ws = f"s[{S_WS}:{S_WS+3}]"
        a(f"s_mul_i32 s{S_T3}, s{S_JOB}, 9363", f"s_lshr_b32 s{S_T3}, s{S_T3}, 16",
          f"s_mul_i32 s{S_T0}, s{S_T3}, {112*16}", f"s_add_u32 s{S_T0}, s{S_T0}, {WS_PRE}",
          f"v_min_u32 v{T+40}, 55, v0", f"v_lshlrev_b32 v{T+41}, 4, v{T+40}")
        def body():
            for mk in range(4):
                a(f"s_add_u32 s{S_T1}, s{S_T0}, {mk*1792*16}")
                for ps in range(2):
                    a(f"buffer_load_dwordx4 {vr(T+16*ps+4*mk,4)}, v{T+41}, {ws}, s{S_T1} offen offset:{896*ps} sc1")
            a("s_waitcnt vmcnt(0)", f"v_cmp_ne_u32 vcc, s{S_TAG}, v{T+2}")
            for i in range(1, 8):
                a(f"v_cmp_ne_u32 s[{S_P}:{S_P+1}], s{S_TAG}, v{T+4*i+2}", f"s_or_b64 vcc, vcc, s[{S_P}:{S_P+1}]")
        self.poll(body)
        a(f"v_lshlrev_b32 v{T+40}, 1, v{T+40}", f"v_add_u32 v{T+40}, {L_BNC+1024}, v{T+40}")
        for ps in range(2):
            b = T + 16 * ps
            a(f"v_add_f32 v{b}, v{b}, v{b+4}", f"v_add_f32 v{b+1}, v{b+1}, v{b+5}",
              f"v_add_f32 v{b+8}, v{b+8}, v{b+12}", f"v_add_f32 v{b+9}, v{b+9}, v{b+13}",
              f"v_cvt_pk_bf16_f32 v{b+2}, v{b}, v{b+1}", f"v_cvt_pk_bf16_f32 v{b+3}, v{b+8}, v{b+9}",
              f"v_lshlrev_b32 v{b}, 16, v{b+2}", f"v_and_b32 v{b+1}, 0xffff0000, v{b+2}",
              f"v_lshlrev_b32 v{b+8}, 16, v{b+3}", f"v_and_b32 v{b+9}, 0xffff0000, v{b+3}")
            self.silu(b, b + 4); self.silu(b + 1, b + 5)
            a(f"v_cvt_pk_bf16_f32 v{b+2}, v{b}, v{b+1}", f"v_lshlrev_b32 v{b}, 16, v{b+2}", f"v_and_b32 v{b+1}, 0xffff0000, v{b+2}",
              f"v_mul_f32 v{b}, v{b}, v{b+8}", f"v_mul_f32 v{b+1}, v{b+1}, v{b+9}", f"v_cvt_pk_bf16_f32 v{b+2}, v{b}, v{b+1}",
              f"ds_write_b16 v{T+40}, v{b+2} offset:{112*ps}", f"ds_write_b16_d16_hi v{T+40}, v{b+2} offset:{224+112*ps}")
        self.ffn_mm(7, L_F2, L_BNC + 1024, 224, T)
        a(f"s_lshl_b32 s{S_T0}, s{S_JOB}, 9", f"s_and_b32 s{S_T1}, s2, 8", f"s_lshl_b32 s{S_T1}, s{S_T1}, 5",
          f"s_add_u32 s{S_T0}, s{S_T0}, s{S_T1}", f"s_add_u32 s{S_T0}, s{S_T0}, {WS_YP}", f"s_add_u32 s{S_T1}, s{S_T0}, {16*448*8}",
          f"v_mov_b32 v{T+2}, v{T+1}", f"v_mov_b32 v{T+1}, s{S_TAG}", f"v_mov_b32 v{T+3}, s{S_TAG}",
          f"s_mov_b64 exec, s[{S_MLO}:{S_MLO+1}]",
          f"buffer_store_dwordx2 {vr(T,2)}, v3, {ws}, s{S_T0} offen sc1",
          f"buffer_store_dwordx2 {vr(T+2,2)}, v3, {ws}, s{S_T1} offen sc1", "s_mov_b64 exec, -1")

    Q, O, S, KV, SP = 8, 40, 104, 152, 200
    KT = [0, 1, 4, 5, 2, 3, 6, 7]

    def kv_loads(self, b, soff):
        ws = f"s[{S_WS}:{S_WS+3}]"
        r = [f"buffer_load_dwordx2 {vr(b+2*i,2)}, v3, {ws}, s{soff} offen offset:{512*i} sc1" for i in range(3)]
        r += [f"s_mov_b64 exec, s[{S_MLO}:{S_MLO+1}]", f"buffer_load_dwordx2 {vr(b+6,2)}, v3, {ws}, s{soff} offen offset:1536 sc1",
              f"s_mov_b64 exec, s[{S_M28}:{S_M28+1}]"]
        r += [f"buffer_load_dwordx4 {vr(b+8+4*i,4)}, v6, {ws}, s{soff} offen offset:{2048+1024*i} sc1" for i in range(2)]
        r += ["s_mov_b64 exec, -1"]
        return r

    def attention(self):
        a, cfg = self.a, self.cfg
        Q, O, S, KV, SP = self.Q, self.O, self.S, self.KV, self.SP
        ws = f"s[{S_WS}:{S_WS+3}]"
        IN, RF, RA, FA, PA, PV = SP, SP + 16, SP + 17, SP + 18, SP + 54, SP + 55
        a("v_lshlrev_b32 v3, 3, v0", "v_lshlrev_b32 v6, 4, v0")
        for i in range(4):
            a(f"s_add_u32 s{S_T0}, s{S_WV}, {1+i}", f"s_and_b32 s{S_T0}, s{S_T0}, 3", f"s_lshl_b32 s{S_T0}, s{S_T0}, 11",
              f"s_add_u32 s{S_T0}, s{S_T0}, {L_QL}", f"v_add_u32 v1, s{S_T0}, v6",
              f"ds_read_b128 {vr(Q+8*i,4)}, v1", f"ds_read_b128 {vr(Q+8*i+4,4)}, v1 offset:1024")
        nf = self.lab("NF")
        a(f"s_cmp_lt_u32 s{S_WV}, 4", f"s_cbranch_scc1 {nf}")
        self.kv_flag("s_waitcnt vmcnt(0)", SP)
        a(f"{nf}:")
        a(f"s_mul_i32 s{S_T0}, s{S_H}, 28", f"v_and_b32 v1, 1, v0", f"v_mul_u32_u24 v1, 27, v1", f"v_add_u32 v1, s{S_T0}, v1",
          "v_lshrrev_b32 v1, 5, v1", f"v_bfe_u32 v2, v0, 1, 1", "v_mul_u32_u24 v2, 14, v2", "v_add_u32 v1, v1, v2",
          "v_bfe_u32 v2, v0, 2, 1", "v_lshl_add_u32 v1, v2, 5, v1", "v_bfe_u32 v2, v0, 3, 1", "v_lshl_add_u32 v1, v2, 7, v1",
          f"v_lshlrev_b32 v{PA}, 7, v1",
          f"s_lshl_b32 s{S_STA}, s{S_WV}, 15", f"s_add_u32 s{S_STA}, s{S_STA}, {WS_KF}",
          f"s_lshl_b32 s{S_KVB}, s{S_H}, 18", f"s_lshl_b32 s{S_T0}, s{S_WV}, 15", f"s_add_u32 s{S_KVB}, s{S_KVB}, s{S_T0}",
          f"s_add_u32 s{S_KVB}, s{S_KVB}, {WS_KV}")
        pl = f"buffer_load_dword v{PV}, v{PA}, {ws}, s{S_STA} offen sc1"
        a(pl)
        a("v_mov_b32 v2, 0xdddddddd", "v_cmp_eq_u32 vcc, 28, v4", "v_mov_b32 v1, 0x3f803f80", "v_cndmask_b32 v1, 0, v1, vcc")
        for b in range(3):
            a(f"v_mov_b32 v{KV+16*b+6}, 0", f"v_mov_b32 v{KV+16*b+7}, 0")
            for i in range(8):
                a(f"v_mov_b32 v{KV+16*b+8+i}, v1")
        for i in range(64):
            a(f"v_mov_b32 v{O+i}, 0")
        a("v_mul_u32_u24 v1, 74, v0", "v_lshrrev_b32 v1, 10, v1", f"v_mul_u32_u24 v7, {896-14*16}, v1", "v_add_u32 v7, v7, v6",
          f"s_and_b32 s{S_T0}, s{S_J}, 3", f"s_mul_i32 s{S_T0}, s{S_T0}, 224", f"s_mul_i32 s{S_T1}, s{S_WV}, {56*896}",
          f"s_add_u32 s{S_WB}, s{S_T0}, s{S_T1}", f"s_mul_i32 s{S_LB}, s{S_WV}, {56*224}",
          f"s_mov_b32 s{S_RX}, -1", f"s_mov_b32 s{S_RX+1}, 0x00ffffff")
        self.ffn_ids()
        a("s_waitcnt lgkmcnt(0)", "s_barrier")
        self.selector()
        self.recheck("s_waitcnt vmcnt(0)", [f"v_cmp_ne_u32 vcc, s{S_TAG}, v{PV}"], [pl])
        self.stamp(6)

        vm = VM()
        def loads(kt):
            a(f"s_add_u32 s{S_T0}, s{S_KVB}, {self.KT[kt]*4096}")
            a(*self.kv_loads(KV + 16 * (kt % 3), S_T0))
            for _ in range(4): vm.add(("K", kt))
            for _ in range(2): vm.add(("V", kt))
        nwo = [0]
        def wo_dma(n):
            a(f"s_mov_b64 exec, s[{S_RX}:{S_RX+1}]")
            for _ in range(n):
                i = nwo[0]; nwo[0] += 1
                a(f"s_add_u32 m0, s{S_LB}, {L_WO + i*896}", f"s_add_u32 s{S_T0}, s{S_WB}, {i*4*896}",
                  f"buffer_load_dwordx4 v7, s[{S_WO}:{S_WO+3}], s{S_T0} offen lds")
                vm.add("wo")
            a("s_mov_b64 exec, -1")
        units = [(kt, q) for kt in range(6) for q in range(4)] + [(kt, q) for q in range(4) for kt in (6, 7)]
        N = len(units)
        sb = lambda u: S + 16 * (u % 3)
        kb = lambda u: KV + 16 * (units[u][0] % 3)
        Ma = lambda u: f"v_mfma_f32_32x32x16_bf16 {vr(sb(u),16)}, {vr(kb(u),4)}, {vr(Q+8*units[u][1],4)}, 0"
        Mb = lambda u: f"v_mfma_f32_32x32x16_bf16 {vr(sb(u),16)}, {vr(kb(u)+4,4)}, {vr(Q+8*units[u][1]+4,4)}, {vr(sb(u),16)}"
        Sm = lambda u, s: f"v_smfmac_f32_32x32x32_bf16 {vr(O+16*units[u][1],16)}, {vr(kb(u)+8+4*s,4)}, {vr(sb(u)+8*s,8)}, v2"
        E = lambda u, i0, i1: [f"v_exp_f32 v{sb(u)+i}, v{sb(u)+i}" for i in range(i0, i1)]
        def ring_addr(s):
            a(f"s_add_u32 s{S_T0}, s{S_WV}, {1+s}", f"s_and_b32 s{S_T0}, s{S_T0}, 3", f"s_and_b32 s{S_T1}, s{S_WV}, 4",
              f"s_or_b32 s{S_T0}, s{S_T0}, s{S_T1}", f"s_lshl_b32 s{S_T1}, s{S_T0}, 12", f"s_add_u32 s{S_T1}, s{S_T1}, {L_RING}",
              f"s_lshl_b32 s{S_T0}, s{S_T0}, 2", f"s_add_u32 s{S_T0}, s{S_T0}, {L_RFLAG}",
              f"v_add_u32 v{RA}, s{S_T1}, v6", f"v_mov_b32 v{FA}, s{S_T0}")
        ring_rd = [f"ds_read_b32 v{RF}, v{FA}"] + [f"ds_read_b128 {vr(IN+4*i,4)}, v{RA} offset:{1024*i}" for i in range(4)]
        def ring_add(s):
            self.recheck("s_waitcnt lgkmcnt(0)", [f"v_cmp_gt_u32 vcc, {s}, v{RF}"], ring_rd, "s_waitcnt lgkmcnt(0)")
            for i in range(8):
                a(f"v_pk_add_f32 {vr(O+16*s+2*i,2)}, {vr(O+16*s+2*i,2)}, {vr(IN+2*i,2)}")
        def ring_wr(s):
            for i in range(4):
                a(f"ds_write_b128 v{RA}, {vr(O+16*s+4*i,4)} offset:{1024*i}")
            a(f"v_mov_b32 v{RF}, {s+1}", f"ds_write_b32 v{FA}, v{RF}")

        loads(0)
        a(vm.wait(("K", 0)), Ma(0), Mb(0))
        loads(1)
        seenK, seenV = {0}, set()
        for u in range(N):
            kt, q = units[u]
            if u in cfg["prio"]:
                a(f"s_setprio {cfg['prio'][u]}")
            if u + 1 < N:
                k1 = units[u + 1][0]
                if k1 not in seenK:
                    a(vm.wait(("K", k1))); seenK.add(k1)
                a(Ma(u + 1))
            a(*E(u, 0, 4))
            if u in (27, 29, 31):
                s = (u - 27) // 2
                if s == 0:
                    ring_addr(0)
                else:
                    ring_add(s)
                ring_wr(s)
            if u + 1 < N:
                a(Mb(u + 1))
            a(*E(u, 4, 8))
            if u > 0:
                a(Sm(u - 1, 1))
            if u < 24 and q == 0:
                if kt == 2:
                    self.recheck(vm.wait("poll"), [f"v_cmp_ne_u32 vcc, s{S_TAG}, v{PV}"], [pl])
                loads(kt + 2)
            if u < 24 and q == 1:
                if kt == 1:
                    a(f"s_add_u32 s{S_STA}, s{S_STA}, {2*32*128}", pl); vm.add("poll")
                if kt < 5:
                    wo_dma(3 if kt < 4 else 2)
                if kt == 0:
                    l1, l2 = self.lab("F"), self.lab("F")
                    a("s_cmp_ge_u32 s2, 224", f"s_cbranch_scc1 {l2}", f"s_cmp_lg_u32 s{S_WV}, 1", f"s_cbranch_scc1 {l1}")
                    self.st1_dma(SP)
                    a(f"{l1}:", f"s_cmp_lg_u32 s{S_WV}, 7", f"s_cbranch_scc1 {l2}")
                    self.st2_dma(SP)
                    a(f"{l2}:")
                if kt == 3:
                    l1 = self.lab("F")
                    a("s_cmp_ge_u32 s2, 224", f"s_cbranch_scc1 {l1}", f"s_cmp_lg_u32 s{S_WV}, 1", f"s_cbranch_scc1 {l1}")
                    self.st1(SP)
                    a(f"{l1}:")
            if u in (28, 30):
                ring_addr((u - 26) // 2); a(*ring_rd)
            a(*E(u, 8, 12))
            if kt not in seenV:
                a(vm.wait(("V", kt))); seenV.add(kt)
            a(Sm(u, 0))
            if u == 31:
                ring_addr(3); a(*ring_rd)
            a(*E(u, 12, 16))
        assert nwo[0] == 14
        a(Sm(N - 1, 1))
        self.stamp(7)
        ring_add(3)
        O3 = O + 48; R = SP + 20; LV = SP + 28
        a(f"s_lshl_b32 s{S_T0}, s{S_WV}, 8", f"s_add_u32 s{S_T0}, s{S_T0}, {L_LX}", f"v_lshl_add_u32 v1, v0, 2, s{S_T0}",
          f"ds_write_b32 v1, v{O3+12}")
        p1, pj = self.lab("PAR"), self.lab("PARJ")
        fin_rd = [f"ds_read_b32 v{RF}, v{FA}", f"ds_read_b128 {vr(IN,4)}, v{RA}", f"ds_read_b128 {vr(IN+4,4)}, v{RA} offset:1024",
                  f"ds_read_b32 v{LV}, v1 offset:128", f"ds_read_b32 v{LV+1}, v1 offset:{128+1024}"]
        a(f"s_cmp_ge_u32 s{S_WV}, 4", f"s_cbranch_scc1 {p1}")
        for par in range(2):
            snd, keep = O3 + 8 * (1 - par), O3 + 8 * par
            a(f"ds_write_b128 v{RA}, {vr(snd,4)}", f"ds_write_b128 v{RA}, {vr(snd+4,4)} offset:1024",
              f"v_mov_b32 v{RF}, 4", f"ds_write_b32 v{FA}, v{RF}")
            op = "v_add_u32" if par == 0 else "v_subrev_u32"
            a(f"{op} v{RA}, 16384, v{RA}", f"{op} v{FA}, 16, v{FA}",
              f"s_and_b32 s{S_T0}, s{S_WV}, 3", f"s_lshl_b32 s{S_T0}, s{S_T0}, 8", f"s_add_u32 s{S_T0}, s{S_T0}, {L_LX}",
              f"v_lshl_add_u32 v1, v4, 2, s{S_T0}")
            a(*fin_rd)
            self.recheck("s_waitcnt lgkmcnt(0)", [f"v_cmp_gt_u32 vcc, 4, v{RF}"], fin_rd, "s_waitcnt lgkmcnt(0)")
            for i in range(4):
                a(f"v_pk_add_f32 {vr(R+2*i,2)}, {vr(keep+2*i,2)}, {vr(IN+2*i,2)}")
            if par == 0:
                a(f"s_branch {pj}", f"{p1}:")
        a(f"{pj}:", f"v_add_f32 v{LV}, v{LV}, v{LV+1}")
        a(f"v_mul_f32 v{LV+1}, 0, v{R}")
        for i in range(1, 8):
            a(f"v_fmac_f32 v{LV+1}, 0, v{R+i}")
        a(f"v_add_f32 v{LV+1}, v{LV+1}, v{LV}", f"v_cmp_nle_f32 vcc, 0x30800000, v{LV+1}",
          f"v_mov_b32 v1, 0x58800000", f"v_cmp_nle_f32 s[{S_P}:{S_P+1}], v{LV+1}, v1",
          f"s_or_b64 vcc, vcc, s[{S_P}:{S_P+1}]")
        if cfg["force_fb"]:
            a("s_branch L_FB")
        else:
            a("s_cbranch_vccnz L_FB")
        a("L_FBRET:", f"v_rcp_f32 v{LV}, v{LV}",
          f"s_and_b32 s{S_T0}, s{S_WV}, 3", f"s_lshl_b32 s{S_T1}, s{S_MB}, 2", f"s_add_u32 s{S_T0}, s{S_T0}, s{S_T1}",
          f"s_mul_i32 s{S_T1}, s{S_T0}, 28672", f"s_mul_i32 s{S_T2}, s{S_H}, 7", f"s_and_b32 s{S_T3}, s{S_WV}, 4",
          f"s_add_u32 s{S_T2}, s{S_T2}, s{S_T3}", f"s_lshl_b32 s{S_T2}, s{S_T2}, 8", f"s_add_u32 s{S_T1}, s{S_T1}, s{S_T2}",
          f"s_add_u32 s{S_T1}, s{S_T1}, {WS_OB}",
          f"s_lshl_b32 s{S_T0}, s{S_T0}, 4", f"s_add_u32 s{S_T0}, s{S_T0}, s{S_H}", f"s_lshl_b32 s{S_T0}, s{S_T0}, 8",
          f"s_lshl_b32 s{S_T2}, s{S_T3}, 5", f"s_add_u32 s{S_T0}, s{S_T0}, s{S_T2}", f"s_add_u32 s{S_T5}, s{S_T0}, {WS_OF}",
          f"s_cmp_eq_u32 s{S_T3}, 0", f"s_cselect_b32 s{S_P+1}, -1, 0", f"s_mov_b32 s{S_P}, -1")
        for i in range(8):
            a(f"v_mul_f32 v{R+i}, v{R+i}, v{LV}")
            if i % 2:
                a(f"v_cvt_pk_bf16_f32 v{IN+i//2}, v{R+i-1}, v{R+i}")
        a(f"buffer_store_dwordx2 {vr(IN,2)}, v3, {ws}, s{S_T1} offen sc1", f"s_mov_b64 exec, s[{S_P}:{S_P+1}]",
          f"buffer_store_dwordx2 {vr(IN+2,2)}, v3, {ws}, s{S_T1} offen offset:512 sc1", "s_mov_b64 exec, -1",
          "s_setprio 0")

    def fallback(self):
        a = self.a
        Q, O, S, KV, SP = self.Q, self.O, self.S, self.KV, self.SP
        Q3 = Q + 24; R = SP + 20; LV = SP + 28; M = SP + 30
        s = vr(S, 16)
        qk = [f"v_mfma_f32_32x32x16_bf16 {s}, {vr(KV,4)}, {vr(Q3,4)}, 0",
              f"v_mfma_f32_32x32x16_bf16 {s}, {vr(KV+4,4)}, {vr(Q3+4,4)}, {s}"]
        a("L_FB:", f"v_mov_b32 v{M}, 0xff800000")
        for ps in range(2):
            L = self.lab("FB")
            a(f"s_lshl_b32 s{S_T0}, s{S_H}, 18", f"s_add_u32 s{S_T0}, s{S_T0}, {WS_KV}", f"s_mov_b32 s{S_T1}, 64", f"{L}:")
            a(*self.kv_loads(KV, S_T0))
            a("s_waitcnt vmcnt(0)", *qk)
            if ps == 0:
                for i in range(8):
                    a(f"v_max3_f32 v{M}, v{M}, v{S+2*i}, v{S+2*i+1}")
            else:
                for i in range(16):
                    a(f"v_sub_f32 v{S+i}, v{S+i}, v{M}", f"v_exp_f32 v{S+i}, v{S+i}")
                for h_ in range(2):
                    a(f"v_smfmac_f32_32x32x32_bf16 {vr(O,16)}, {vr(KV+8+4*h_,4)}, {vr(S+8*h_,8)}, v2")
                a("s_nop 15")
            a(f"s_add_u32 s{S_T0}, s{S_T0}, 4096", f"s_sub_u32 s{S_T1}, s{S_T1}, 1", f"s_cmp_lg_u32 s{S_T1}, 0", f"s_cbranch_scc1 {L}")
            if ps == 0:
                a(f"v_mov_b32 v{M+1}, v{M}", f"v_permlane32_swap_b32 v{M}, v{M+1}", f"v_max_f32 v{M}, v{M}, v{M+1}")
                for i in range(16):
                    a(f"v_mov_b32 v{O+i}, 0")
        a(f"v_mov_b32 v{M}, v{O+12}", f"v_mov_b32 v{LV}, v{O+12}", f"v_permlane32_swap_b32 v{M}, v{LV}",
          f"s_cmp_ge_u32 s{S_WV}, 4", "s_cselect_b64 vcc, -1, 0")
        for i in range(8):
            a(f"v_cndmask_b32 v{R+i}, v{O+i}, v{O+8+i}, vcc")
        a("s_branch L_FBRET")

    def g_block(self, X, ST, G, t, upd=None):
        a = self.a
        for i in range(4):
            lo, hi = G + 2 * i, G + 2 * i + 1
            a(f"v_lshlrev_b32 v{lo}, 16, v{X+i}", f"v_and_b32 v{hi}, 0xffff0000, v{X+i}",
              f"v_sub_f32 v{lo}, v{lo}, v{ST}", f"v_sub_f32 v{hi}, v{hi}, v{ST}", f"v_cvt_pk_bf16_f32 v{t}, v{lo}, v{hi}",
              f"v_lshlrev_b32 v{lo}, 16, v{t}", f"v_and_b32 v{hi}, 0xffff0000, v{t}",
              f"v_mul_f32 v{lo}, v{lo}, v{ST+1}", f"v_mul_f32 v{hi}, v{hi}, v{ST+1}", f"v_cvt_pk_bf16_f32 v{t}, v{lo}, v{hi}",
              f"v_lshlrev_b32 v{lo}, 16, v{t}", f"v_and_b32 v{hi}, 0xffff0000, v{t}")
            if upd is not None:
                a(f"v_add_f32 v{lo}, v{lo}, v{upd+2*i}", f"v_add_f32 v{hi}, v{hi}, v{upd+2*i+1}", f"v_cvt_pk_bf16_f32 v{t}, v{lo}, v{hi}",
                  f"v_lshlrev_b32 v{lo}, 16, v{t}", f"v_and_b32 v{hi}, 0xffff0000, v{t}")
            a(f"v_mul_f32 v{t}, 0xbfb8aa3b, v{lo}", f"v_mul_f32 v{t+1}, 0xbfb8aa3b, v{hi}", f"v_exp_f32 v{t}, v{t}",
              f"v_exp_f32 v{t+1}, v{t+1}", f"v_add_f32 v{t}, 1.0, v{t}", f"v_add_f32 v{t+1}, 1.0, v{t+1}",
              f"v_rcp_f32 v{t}, v{t}", f"v_rcp_f32 v{t+1}, v{t+1}", f"v_mul_f32 v{lo}, v{lo}, v{t}", f"v_mul_f32 v{hi}, v{hi}, v{t+1}",
              f"v_cvt_pk_bf16_f32 v{t}, v{lo}, v{hi}", f"v_lshlrev_b32 v{lo}, 16, v{t}", f"v_and_b32 v{hi}, 0xffff0000, v{t}")

    def p3(self):
        a = self.a; ws = f"s[{S_WS}:{S_WS+3}]"
        WOF, OF_, ACC = 8, 64, 120
        X, ST, HD, G = 136, 140, 144, 148
        TID, ROW, CH, XA, T = 156, 157, 158, 159, 160
        PS = 464
        a(f"s_lshl_b32 s{S_T0}, s{S_WV}, 6", f"v_add_u32 v{TID}, s{S_T0}, v0", f"v_min_u32 v{TID}, 447, v{TID}",
          f"v_mul_u32_u24 v{ROW}, 4682, v{TID}", f"v_lshrrev_b32 v{ROW}, 16, v{ROW}", f"v_mul_u32_u24 v{CH}, 14, v{ROW}",
          f"v_sub_u32 v{CH}, v{TID}, v{CH}",
          f"s_lshr_b32 s{S_T0}, s{S_J}, 2", f"s_lshl_b32 s{S_T1}, s{S_MB}, 2", f"s_add_u32 s{S_RQ}, s{S_T0}, s{S_T1}",
          f"s_mul_i32 s{S_XB}, s{S_RQ}, {32*896}", f"s_and_b32 s{S_C}, s{S_J}, 3", f"s_mul_i32 s{S_T0}, s{S_C}, 224",
          f"s_add_u32 s{S_XB}, s{S_XB}, s{S_T0}",
          f"v_mul_u32_u24 v{XA}, 896, v{ROW}", f"v_lshl_add_u32 v{XA}, v{CH}, 4, v{XA}",
          f"buffer_load_dwordx4 {vr(X,4)}, v{XA}, s[{S_X}:{S_X+3}], s{S_XB} offen",
          f"s_lshl_b32 s{S_T0}, s{S_RQ}, 9", f"s_add_u32 s{S_T0}, s{S_T0}, {WS_ST}", f"v_lshlrev_b32 v{T}, 4, v{ROW}",
          f"buffer_load_dwordx2 {vr(ST,2)}, v{T}, {ws}, s{S_T0} offen sc1",
          f"v_mov_b32 v{T+1}, {WS_SELH}")
        hl = f"buffer_load_dwordx4 {vr(HD,4)}, v{T+1}, {ws}, 0 offen sc1"
        a(hl)
        a("s_barrier")
        a(f"v_bfe_u32 v{T+2}, v0, 2, 2", f"v_lshl_add_u32 v{T+2}, v5, 3, v{T+2}", f"v_mul_u32_u24 v{T+2}, 224, v{T+2}",
          f"v_bfe_u32 v{T+3}, v0, 4, 1", f"v_and_b32 v{T+4}, 3, v0", f"v_lshl_add_u32 v{T+3}, v{T+3}, 2, v{T+4}",
          f"v_min_u32 v{T+3}, 6, v{T+3}", f"v_lshl_add_u32 v{T+2}, v{T+3}, 3, v{T+2}",
          f"s_and_b32 s{S_T0}, s{S_WV}, 3", f"s_mul_i32 s{S_T0}, s{S_T0}, 56", f"s_lshr_b32 s{S_T1}, s{S_WV}, 2",
          f"s_mul_i32 s{S_T2}, s{S_T1}, {224*224}", f"s_add_u32 s{S_T0}, s{S_T0}, s{S_T2}", f"v_add_u32 v{T+2}, s{S_T0}, v{T+2}")
        for p in range(14):
            for rd in range(2):
                a(f"ds_read_b64_tr_b16 {vr(WOF+4*p+2*rd,2)}, v{T+2} offset:{L_WO + (16*p+4*rd)*224}")
            if p % 4 == 3:
                a("s_waitcnt lgkmcnt(6)")
        self.kv_flag("s_waitcnt vmcnt(3)", T + 4)
        self.stamp(8)
        l7, lj = self.lab("W7"), self.lab("W7J")
        a(f"s_cmp_eq_u32 s{S_WV}, 7", f"s_cbranch_scc1 {l7}", "s_waitcnt vmcnt(2)")
        self.g_block(X, ST, G, T + 4)
        a(f"s_branch {lj}", f"{l7}:", "s_cmp_ge_u32 s2, 224", f"s_cbranch_scc1 {lj}")
        self.st2(200)
        a(f"{lj}:")
        self.recheck("s_waitcnt vmcnt(1)", [f"v_cmp_ne_u32 vcc, s{S_TAG}, v{HD+3}"], [hl])
        a(f"s_lshl_b32 s{S_T0}, s{S_RQ}, 3", f"s_add_u32 s{S_T0}, s{S_T0}, s{S_WV}", f"s_lshl_b32 s{S_T0}, s{S_T0}, 9",
          f"s_add_u32 s{S_T0}, s{S_T0}, {WS_OF}", f"v_and_b32 v{T+4}, 3, v0", f"v_lshlrev_b32 v{T+4}, 7, v{T+4}",
          f"v_readfirstlane_b32 s{S_RX}, v{HD}", f"v_readfirstlane_b32 s{S_RX+1}, v{HD+1}", f"v_readfirstlane_b32 s{S_RX+2}, v{HD+2}")
        def body():
            a(f"buffer_load_dword v{T+5}, v{T+4}, {ws}, s{S_T0} offen sc1", "s_waitcnt vmcnt(0)", f"v_cmp_ne_u32 vcc, s{S_TAG}, v{T+5}")
        self.poll(body)
        self.stamp(9)
        a(f"s_mul_i32 s{S_T0}, s{S_RQ}, 28672", f"s_mul_i32 s{S_T1}, s{S_WV}, 3584", f"s_add_u32 s{S_T0}, s{S_T0}, s{S_T1}",
          f"s_add_u32 s{S_T0}, s{S_T0}, {WS_OB}", f"s_add_u32 m0, s{S_T1}, {L_RING}")
        for i in range(4):
            if i == 3:
                a(f"s_mov_b64 exec, s[{S_MLO}:{S_MLO+1}]")
            a(f"buffer_load_dwordx4 v6, {ws}, s{S_T0} offen offset:{1024*i} sc1 lds")
        a("s_mov_b64 exec, -1")
        a(f"v_mul_u32_u24 v{T+4}, 586, v{TID}", f"v_lshrrev_b32 v{T+4}, 16, v{T+4}",
          f"v_mul_u32_u24 v{T+5}, {4*448*8 - 112*8}, v{T+4}", f"v_lshl_add_u32 v{T+5}, v{TID}, 3, v{T+5}",
          f"v_lshlrev_b32 v{T+6}, 2, v{TID}", f"v_add_u32 v{T+6}, {L_UPD}, v{T+6}")
        for tok in range(2):
            sk = self.lab("NOUP")
            a(f"s_lshr_b32 s{S_T0}, s{S_RX+tok}, 5", f"s_cmp_lg_u32 s{S_T0}, s{S_RQ}", f"s_cbranch_scc1 {sk}",
              f"s_mul_i32 s{S_T0}, s{S_C}, {112*8}", f"s_add_u32 s{S_T0}, s{S_T0}, {WS_YP + tok*16*448*8}")
            def body():
                for i in range(4):
                    a(f"s_add_u32 s{S_T1}, s{S_T0}, {i*448*8}", f"buffer_load_dwordx2 {vr(T+8+2*i,2)}, v{T+5}, {ws}, s{S_T1} offen sc1")
                a("s_waitcnt vmcnt(0)", f"v_cmp_ne_u32 vcc, s{S_TAG}, v{T+9}")
                for i in range(1, 4):
                    a(f"v_cmp_ne_u32 s[{S_P}:{S_P+1}], s{S_TAG}, v{T+9+2*i}", f"s_or_b64 vcc, vcc, s[{S_P}:{S_P+1}]")
            self.poll(body)
            a(f"v_add_f32 v{T+8}, v{T+8}, v{T+10}", f"v_add_f32 v{T+12}, v{T+12}, v{T+14}", f"v_add_f32 v{T+8}, v{T+8}, v{T+12}",
              f"ds_write_b32 v{T+6}, v{T+8} offset:{tok*1792}", f"{sk}:")
        a(f"s_lshr_b32 s{S_T1}, s{S_WV}, 2", f"s_mul_i32 s{S_T0}, s{S_T1}, {14*1024}", f"s_add_u32 s{S_T0}, s{S_T0}, {L_RING}",
          f"v_lshlrev_b32 v{T+2}, 3, v4", f"v_lshl_add_u32 v{T+2}, v5, 9, v{T+2}", f"v_add_u32 v{T+2}, s{S_T0}, v{T+2}",
          f"s_mul_i32 s{S_T0}, s{S_T1}, {32*PS}", f"s_and_b32 s{S_T1}, s{S_WV}, 3", f"s_mul_i32 s{S_T1}, s{S_T1}, 112",
          f"s_add_u32 s{S_T0}, s{S_T0}, s{S_T1}", f"v_mul_u32_u24 v{T+3}, {PS}, v4", f"v_lshl_add_u32 v{T+3}, v5, 4, v{T+3}",
          f"v_add_u32 v{T+3}, s{S_T0}, v{T+3}",
          f"s_lshl_b32 s{S_T0}, s{S_RQ}, 5", f"v_add_u32 v{T+4}, s{S_T0}, v{ROW}",
          f"v_cmp_eq_u32 s[{S_P}:{S_P+1}], s{S_RX}, v{T+4}", f"v_cmp_eq_u32 s[{S_P2}:{S_P2+1}], s{S_RX+1}, v{T+4}",
          f"s_or_b64 vcc, s[{S_P}:{S_P+1}], s[{S_P2}:{S_P2+1}]",
          "s_waitcnt vmcnt(0) lgkmcnt(0)", "s_barrier")
        nu = self.lab("NOG")
        a(f"s_cbranch_vccz {nu}")
        U = T + 8
        a(f"v_mov_b32 v{T+4}, {L_UPD}", f"v_mov_b32 v{T+5}, {L_UPD+1792}", f"v_cndmask_b32 v{T+4}, v{T+4}, v{T+5}, s[{S_P2}:{S_P2+1}]",
          f"v_lshl_add_u32 v{T+4}, v{CH}, 5, v{T+4}")
        for p in range(4):
            a(f"ds_read_b128 {vr(U+8*p,4)}, v{T+4} offset:{448*p}", f"ds_read_b128 {vr(U+8*p+4,4)}, v{T+4} offset:{448*p+16}")
        a(f"s_lshl_b32 s{S_T0}, s{S_RX+2}, 16", f"s_and_b32 s{S_T1}, s{S_RX+2}, 0xffff0000", f"v_mov_b32 v{T+5}, s{S_T0}",
          f"v_mov_b32 v{T+6}, s{S_T1}", f"v_cndmask_b32 v{T+5}, v{T+5}, v{T+6}, s[{S_P2}:{S_P2+1}]", "s_waitcnt lgkmcnt(0)")
        for i in range(8):
            a(f"v_add_f32 v{U+i}, v{U+i}, v{U+8+i}", f"v_add_f32 v{U+16+i}, v{U+16+i}, v{U+24+i}", f"v_add_f32 v{U+i}, v{U+i}, v{U+16+i}")
        for i in range(4):
            lo, hi = U + 2 * i, U + 2 * i + 1
            a(f"v_cvt_pk_bf16_f32 v{T+6}, v{lo}, v{hi}", f"v_lshlrev_b32 v{lo}, 16, v{T+6}", f"v_and_b32 v{hi}, 0xffff0000, v{T+6}",
              f"v_mul_f32 v{lo}, v{lo}, v{T+5}", f"v_mul_f32 v{hi}, v{hi}, v{T+5}", f"v_cvt_pk_bf16_f32 v{T+6}, v{lo}, v{hi}",
              f"v_cndmask_b32 v{T+6}, 0, v{T+6}, vcc",
              f"v_lshlrev_b32 v{lo}, 16, v{T+6}", f"v_and_b32 v{hi}, 0xffff0000, v{T+6}")
        self.g_block(X, ST, G, T + 6, upd=U)
        a(f"{nu}:")
        acc = vr(ACC, 16)
        def rdo(p):
            a(f"ds_read_b64 {vr(OF_+4*p,2)}, v{T+2} offset:{1024*p}", f"ds_read_b64 {vr(OF_+4*p+2,2)}, v{T+2} offset:{1024*p+256}")
        for p in range(6):
            rdo(p)
        for p in range(14):
            rem = min(14, p + 6) - (p + 1)
            a(f"s_waitcnt lgkmcnt({2*rem})", f"v_mfma_f32_32x32x16_bf16 {acc}, {vr(WOF+4*p,4)}, {vr(OF_+4*p,4)}, {'0' if p == 0 else acc}")
            if p + 6 < 14:
                rdo(p + 6)
        a(f"v_mul_u32_u24 v{T+4}, {PS}, v{ROW}", f"v_lshl_add_u32 v{T+4}, v{CH}, 5, v{T+4}")
        for qd in range(4):
            if qd == 3:
                a(f"s_mov_b64 exec, s[{S_MLO}:{S_MLO+1}]")
            a(f"ds_write_b128 v{T+3}, {vr(ACC+4*qd,4)} offset:{32*qd}")
        a("s_mov_b64 exec, -1", "s_waitcnt lgkmcnt(0)", "s_barrier")
        a(f"s_cmp_eq_u32 s{S_WV}, 7", "s_cbranch_scc1 L_FIN")
        for p in range(2):
            a(f"ds_read_b128 {vr(U+8*p,4)}, v{T+4} offset:{32*PS*p}", f"ds_read_b128 {vr(U+8*p+4,4)}, v{T+4} offset:{32*PS*p+16}")
        for i in range(4):
            a(f"v_lshlrev_b32 v{U+16+2*i}, 16, v{X+i}", f"v_and_b32 v{U+17+2*i}, 0xffff0000, v{X+i}")
        a("s_waitcnt lgkmcnt(0)")
        for i in range(4):
            lo, hi = U + 2 * i, U + 2 * i + 1
            a(f"v_add_f32 v{lo}, v{lo}, v{lo+8}", f"v_add_f32 v{hi}, v{hi}, v{hi+8}", f"v_cvt_pk_bf16_f32 v{T+6}, v{lo}, v{hi}",
              f"v_lshlrev_b32 v{lo}, 16, v{T+6}", f"v_and_b32 v{hi}, 0xffff0000, v{T+6}",
              f"v_mul_f32 v{lo}, v{lo}, v{G+2*i}", f"v_mul_f32 v{hi}, v{hi}, v{G+2*i+1}", f"v_cvt_pk_bf16_f32 v{T+6}, v{lo}, v{hi}",
              f"v_lshlrev_b32 v{lo}, 16, v{T+6}", f"v_and_b32 v{hi}, 0xffff0000, v{T+6}",
              f"v_add_f32 v{lo}, v{lo}, v{lo+16}", f"v_add_f32 v{hi}, v{hi}, v{hi+16}", f"v_cvt_pk_bf16_f32 v{X+i}, v{lo}, v{hi}")
        a(f"buffer_store_dwordx4 {vr(X,4)}, v{XA}, s[{S_OUT}:{S_OUT+3}], s{S_XB} offen")
        a("L_FIN:")
        ne = self.lab("NE")
        a(f"s_cmp_lg_u32 s2, 0", f"s_cbranch_scc1 {ne}", f"s_cmp_lg_u32 s{S_WV}, 7", f"s_cbranch_scc1 {ne}",
          f"s_mov_b32 s{S_T5}, {WS_EPOCH}")
        self.kv_flag("s_nop 0", T + 4)
        a(f"{ne}:")
        self.stamp(10)

    def build(self):
        a = self.a
        self.prologue()
        self.p1()
        self.attention()
        self.p3()
        self.write_stamps(11)
        a("s_endpgm")
        self.fallback()
        a("L_END:", "s_endpgm")
        body, n = hazard.fix(".text\n" + a.text(), verbose=self.cfg.get("hzv", False))
        body = body[len(".text\n"):]
        return self.header() + body + self.footer()

    def write_stamps(self, n):
        if not self.cfg["stamps"]:
            return
        a = self.a
        a(f"s_lshl_b32 s{S_T0}, s2, 3", f"s_add_u32 s{S_T0}, s{S_T0}, s{S_WV}", f"s_lshl_b32 s{S_T0}, s{S_T0}, 6",
          f"s_add_u32 s{S_T0}, s{S_T0}, {WS_STAMP}", "v_mov_b32 v2, 0")
        for i in range(n):
            a(f"v_mov_b32 v3, s{S_ST+2*i}", f"buffer_store_dword v3, v2, s[{S_WS}:{S_WS+3}], s{S_T0} offen offset:{4*i}")

    def header(self):
        ref = open(f"cdna_kernels/{NAME}.s.ref").read().split("\n")
        head = [l for l in ref if l.startswith(";") and "@launch" not in l]
        head.append(f"; @launch grid=(256,1,1) block=(512,1,1) lds={LDS_SIZE}")
        head += ['.amdgcn_target "amdgcn-amd-amdhsa--gfx950"', ".text", f".globl {NAME}_kernel", ".p2align 8",
                 f".type {NAME}_kernel,@function", f"{NAME}_kernel:"]
        return "\n".join(head) + "\n"

    def footer(self):
        return f""".section .rodata,"a"
.p2align 6
.amdhsa_kernel {NAME}_kernel
  .amdhsa_next_free_vgpr 256
  .amdhsa_next_free_sgpr 102
  .amdhsa_accum_offset 256
  .amdhsa_group_segment_fixed_size 0
  .amdhsa_kernarg_size 88
  .amdhsa_user_sgpr_count 2
  .amdhsa_user_sgpr_kernarg_segment_ptr 1
  .amdhsa_system_sgpr_workgroup_id_x 1
.end_amdhsa_kernel
"""


if __name__ == "__main__":
    import json
    cfg = {}
    out = f"cdna_kernels/{NAME}.s"
    for arg in sys.argv[1:]:
        if arg.startswith("out="):
            out = arg[4:]
        else:
            k, v = arg.split("=", 1)
            cfg[k] = eval(v)
    open(out, "w").write(Gen(cfg).build())
    print("wrote", out)
```
